```python
import torch

def _softmax(x, axis=-1):
    return torch.softmax(x, dim=axis)
def _gelu(x):
    return torch.nn.functional.gelu(x, approximate="tanh")
def _silu(x):
    return torch.nn.functional.silu(x)
def _sigmoid(x):
    return torch.sigmoid(x)
def _layernorm(x, axis=-1, eps=1e-5):
    m = x.mean(dim=axis, keepdim=True)
    v = x.var(dim=axis, keepdim=True, unbiased=False)
    return (x - m) / torch.sqrt(v + eps)
def _scatter_add(tgt, idx, src, axis=0):
    return tgt.clone().index_add_(axis, idx, src)
def _segment_sum(src, seg, n):
    out = torch.zeros((n,) + src.shape[1:], dtype=src.dtype)
    return out.index_add_(0, seg, src)
def _pad(x, pw):
    flat = tuple(v for pair in reversed(pw) for v in pair)
    return torch.nn.functional.pad(x, flat)

kernel_name = 'gated_mix__sliding_block_cached__swiglu_ffn__decode'

def setup_inputs():

    _w = (lambda a: (lambda t: t.to(torch.bfloat16) if t.is_floating_point() else t)(torch.as_tensor(a)))
    def _A_setup():
        B, Sq, D = 2, 1, 512
        Hq, Hkv, Sk, Dh = 32, 8, 16384, 128
        assert Hq % Hkv == 0, (Hq, Hkv)
        return {
            "x": _w((lambda *s: torch.randn(*s, dtype=torch.bfloat16) * 0.05)(B, Sq, D)),
            "k_cache": _w((lambda *s: torch.randn(*s, dtype=torch.bfloat16) * 6.4)(B, Hkv, Sk, Dh)),
            "v_cache": _w((lambda *s: torch.randn(*s, dtype=torch.bfloat16) * 0.4)(B, Hkv, Sk, Dh)),
            "wq": _w((lambda *s: torch.randn(*s, dtype=torch.bfloat16) * 6.4)(D, Hq * Dh) * (D ** -0.5)),
            "wo": _w((lambda *s: torch.randn(*s, dtype=torch.bfloat16) * 0.4)(Hq * Dh, D) * ((Hq * Dh) ** -0.5)),
        }
    _A_in = _A_setup()

    def _B_setup():
        B, S, D, F = 2, 1, 512, 1792
        return {
            "x": _w((lambda *s: torch.randn(*s, dtype=torch.bfloat16) * 0.05)(B, S, D)),
            "w_gate": _w((lambda *s: torch.randn(*s, dtype=torch.bfloat16) * 0.05)(D, F)),
            "w_up": _w((lambda *s: torch.randn(*s, dtype=torch.bfloat16) * 0.05)(D, F)),
            "w_down": _w((lambda *s: torch.randn(*s, dtype=torch.bfloat16) * 0.05)(F, D)),
        }
    _B_in = _B_setup()

    return {
        "A_x": _A_in["x"],
        "A_k_cache": _A_in["k_cache"],
        "A_v_cache": _A_in["v_cache"],
        "A_wq": _A_in["wq"],
        "A_wo": _A_in["wo"],
        "B_x": _B_in["x"],
        "B_w_gate": _B_in["w_gate"],
        "B_w_up": _B_in["w_up"],
        "B_w_down": _B_in["w_down"],
        "gate_w": _w((lambda *s: torch.randn(*s, dtype=torch.bfloat16) * 0.05)(512) * 16.0),
    }

def reference(A_x, A_k_cache, A_v_cache, A_wq, A_wo, B_x, B_w_gate, B_w_up, B_w_down, gate_w):
    def _A_ref(x, k_cache, v_cache, wq, wo):
        B, Sq, D = x.shape
        Hq, Dh = 32, 128
        Hkv, Sk = k_cache.shape[1], k_cache.shape[2]
        W = min(4096, max(256, Sk // 4))
        rep = Hq // Hkv
        q = (lambda x, *d: x.permute(*d))((x @ wq).reshape(B, Sq, Hq, Dh), 0, 2, 1, 3)
        k = (lambda x, n, axis: torch.repeat_interleave(x, n, dim=axis))(k_cache[:, :, Sk - W:, :], rep, axis=1)
        v = (lambda x, n, axis: torch.repeat_interleave(x, n, dim=axis))(v_cache[:, :, Sk - W:, :], rep, axis=1)
        scores = torch.einsum("bhqd,bhkd->bhqk", q, k) * (Dh ** -0.5)
        p = _softmax(scores, axis=-1)
        o = torch.einsum("bhqk,bhkd->bhqd", p, v)
        return (lambda x, *d: x.permute(*d))(o, 0, 2, 1, 3).reshape(B, Sq, Hq * Dh) @ wo

    def _B_ref(x, w_gate, w_up, w_down):
        g = _silu(x @ w_gate)
        u = x @ w_up
        return (g * u) @ w_down

    x = A_x
    g = _sigmoid((x * gate_w).sum(-1, keepdims=True))
    a = _A_ref(x, A_k_cache, A_v_cache, A_wq, A_wo)
    b = _B_ref(x, B_w_gate, B_w_up, B_w_down)
    return g * a + (1 - g) * b
```

```python
import sys
NAME = "gated_mix__sliding_block_cached__swiglu_ffn__decode_kernel"
HDR = open("gated_mix__sliding_block_cached__swiglu_ffn__decode.s.ref").read().split("; Override launch")[0]

QP, FP, ML, AP, OP = 0x1000, 0x41000, 0xB1000, 0xB3000, 0x133000
STAMP = 0x8000000
K_L, V_L, W_L, D_L = 0, 65536, 131072, 147456
MISC = 155648
Q_L = MISC
P_L = MISC + 1024
MX_L = MISC + 3072
L_L = MISC + 3200
G_L = MISC + 3328
O_L = MISC + 3344
H_L = MISC + 3600
LDS_TOTAL = MISC + 3840
SPIN = 200000

def gen(fn, nt_kv=True, nt_w=True, stamps=False):
    L = []
    def A(s):
        for line in s.strip("\n").split("\n"):
            L.append("    " + line.strip() if not line.strip().endswith(":") else line.strip())
    fkv = " nt" if nt_kv else ""
    fw = " nt" if nt_w else ""
    nst = [0]
    def stamp(i):
        if stamps:
            A(f"s_memrealtime s[{60+2*i}:{61+2*i}]")
    def dump_stamps(lo, hi):
        if not stamps: return
        A("s_waitcnt lgkmcnt(0)")
        A("s_mov_b64 exec, 1")
        A(f"s_mul_i32 s44, s2, 128\ns_add_u32 s44, s44, {STAMP}\nv_mov_b32 v1, s44")
        for i in range(lo, hi):
            A(f"v_mov_b32 v2, s{60+2*i}\nv_mov_b32 v3, s{61+2*i}\nglobal_store_dwordx2 v1, v[2:3], s[32:33] offset:{8*i}\ns_nop 1")

    def get_tag():
        A("s_waitcnt lgkmcnt(0)")
        A("s_add_u32 s34, s34, 1\ns_and_b32 s41, s34, 0x3ff")

    A(f"""
    s_cmp_ge_u32 s2, 256
    s_cbranch_scc1 L_end""")
    stamp(0)
    A(f"""
    s_load_dwordx16 s[8:23], s[0:1], 0
    s_load_dwordx8 s[24:31], s[0:1], 64
    s_load_dwordx2 s[32:33], s[0:1], 96
    v_lshrrev_b32 v1, 6, v0
    v_and_b32 v0, 63, v0
    v_readfirstlane_b32 s37, v1
    s_and_b32 s35, s2, 7
    s_lshr_b32 s36, s2, 3
    v_lshrrev_b32 v2, 4, v0
    v_and_b32 v3, 15, v0
    s_mov_b32 s38, 0xfffffc00
    s_mov_b32 s50, {SPIN}
    s_cmp_lg_u32 s37, 0
    s_cbranch_scc1 L_notq
    """)
    A(f"""
    s_setprio 3
    s_and_b32 s44, s36, 3
    s_lshr_b32 s45, s36, 2
    s_lshl_b32 s46, s35, 2
    s_add_u32 s46, s46, s44
    s_lshl_b32 s46, s46, 8
    s_lshl_b32 s47, s45, 19
    s_add_u32 s46, s46, s47
    v_lshlrev_b32 v4, 16, v2
    v_lshl_add_u32 v4, v3, 4, v4
    v_add_u32 v4, s46, v4
    v_bfe_u32 v5, v3, 2, 1
    v_lshlrev_b32 v5, 10, v5
    v_lshl_add_u32 v5, v2, 4, v5
    s_lshl_b32 s47, s45, 7
    v_add_u32 v5, s47, v5
    s_movk_i32 s48, 0x2000
    s_waitcnt lgkmcnt(0)
    s_load_dword s34, s[32:33], 0
    global_load_dwordx4 v[8:11], v5, s[8:9]
    global_load_dwordx4 v[12:15], v5, s[8:9] offset:64
    """)
    for i in range(16):
        A(f"global_load_dwordx4 v[{16+4*i}:{19+4*i}], v4, s[14:15]{fw}")
        if i == 7: A("v_add_u32 v4, 204800, v4")
        elif i < 15: A("v_add_u32 v4, s48, v4")
    A("s_barrier")
    A(f"""
    s_mov_b32 s39, 0x05040100
    s_mov_b32 s40, 0x07060302
    s_mov_b32 s42, 0x11111111
    s_mov_b32 s43, 0x11111111
    s_waitcnt vmcnt(16)
    """)
    for jj in range(4):
        for t in range(2):
            for r in range(4):
                A(f"v_cndmask_b32 v{80+16*t+4*jj+r}, 0, v{8+4*t+r}, s[42:43]")
        if jj < 3: A("s_lshl_b64 s[42:43], s[42:43], 1")
    A(f"""
    s_lshl_b32 s46, s35, 15
    s_lshl_b32 s47, s36, 9
    s_add_u32 s47, s47, s46
    s_add_u32 s47, s47, {QP}
    v_and_b32 v5, 1, v2
    v_lshlrev_b32 v5, 14, v5
    v_lshl_add_u32 v5, v3, 5, v5
    v_lshrrev_b32 v6, 1, v2
    v_lshl_add_u32 v5, v6, 4, v5
    v_add_u32 v5, s47, v5
    """)
    A(f"""
    s_lshr_b32 s47, s36, 4
    s_lshl_b32 s47, s47, 14
    s_add_u32 s47, s47, s46
    s_add_u32 s47, s47, {QP}
    v_lshlrev_b32 v6, 4, v0
    v_add_u32 v6, s47, v6
    """)
    def perm_mfma(wbase, nload_total, abase_fn, dbase, t, first_fn):
        for p in range(4):
            A(f"s_waitcnt vmcnt({nload_total - 8*t - 2*p - 2})")
            a = wbase + 32*t + 8*p
            for c in range(4):
                A(f"v_perm_b32 v{112+4*(2*c)+p}, v{a+4+c}, v{a+c}, s39")
                A(f"v_perm_b32 v{112+4*(2*c+1)+p}, v{a+4+c}, v{a+c}, s40")
        for j in range(8):
            d = dbase + 4*(j >> 2)
            ab = abase_fn(j)
            c = "0" if first_fn(j) else f"v[{d}:{d+3}]"
            A(f"v_mfma_f32_16x16x32_bf16 v[{d}:{d+3}], v[{ab}:{ab+3}], v[{112+4*j}:{115+4*j}], {c}")
    for t in range(2):
        perm_mfma(16, 16, lambda j: 80 + 16*t + 4*(j & 3), 144, t, lambda j: t == 0 and (j & 3) == 0)
    get_tag()
    A(f"""
    v_mov_b32 v7, s41
    s_mov_b32 s42, 0
    s_mov_b32 s43, -1
    s_nop 3
    """)
    for r in range(4):
        A(f"v_cndmask_b32 v{144+r}, v{144+r}, v{148+r}, s[42:43]")
    for r in range(4):
        A(f"v_and_or_b32 v{144+r}, v{144+r}, s38, v7")
    A("global_store_dwordx4 v5, v[144:147], s[32:33] sc1")
    stamp(1)
    A("s_waitcnt vmcnt(0)")
    stamp(2)
    A("L_qg:")
    A("v_mov_b32 v4, v6")
    for i in range(16):
        A(f"global_load_dwordx4 v[{16+4*i}:{19+4*i}], v4, s[32:33] offset:{(i & 3)*1024} sc1")
        if (i & 3) == 3 and i < 15: A("v_add_u32 v4, 0x1000, v4")
    for i in range(16):
        A(f"s_waitcnt vmcnt({15-i})")
        b = 16 + 4*i
        for r in range(4):
            A(f"v_xor_b32 v{b+r}, s41, v{b+r}")
        if i == 0:
            A(f"v_or3_b32 v8, v{b}, v{b+1}, v{b+2}\nv_or_b32 v8, v8, v{b+3}")
        else:
            A(f"v_or3_b32 v8, v8, v{b}, v{b+1}\nv_or3_b32 v8, v8, v{b+2}, v{b+3}")
        if i >= 2:
            acc = 16 + 4*(i & 1)
            for r in range(4):
                A(f"v_add_f32 v{acc+r}, v{acc+r}, v{b+r}")
    A(f"""
    v_and_b32 v8, 0x3ff, v8
    v_cmp_ne_u32 vcc, 0, v8
    s_sub_u32 s50, s50, 1
    s_cbranch_scc1 L_qdone
    s_cbranch_vccnz L_qg
    L_qdone:
    v_cvt_pk_bf16_f32 v8, v16, v17
    v_cvt_pk_bf16_f32 v9, v18, v19
    v_cvt_pk_bf16_f32 v10, v20, v21
    v_cvt_pk_bf16_f32 v11, v22, v23
    v_lshlrev_b32 v4, 3, v0
    v_add_u32 v4, {Q_L}, v4
    ds_write_b64 v4, v[8:9]
    ds_write_b64 v4, v[10:11] offset:512
    s_waitcnt lgkmcnt(0)
    """)
    stamp(3)
    A("s_barrier")
    dump_stamps(0, 4)
    A("s_endpgm")

    A("L_notq:")
    A("s_cmp_lg_u32 s37, 1\ns_cbranch_scc1 L_att")
    A(f"""
    s_setprio 3
    s_and_b32 s44, s2, 15
    s_lshr_b32 s45, s2, 4
    s_mul_i32 s46, s44, {32*3584}
    s_lshl_b32 s47, s45, 8
    s_add_u32 s46, s46, s47
    v_mul_u32_u24 v4, {8*3584}, v2
    v_lshl_add_u32 v4, v3, 4, v4
    v_add_u32 v4, s46, v4
    v_and_b32 v5, 1, v3
    v_lshlrev_b32 v5, 10, v5
    v_lshl_add_u32 v5, v2, 4, v5
    s_lshl_b32 s47, s44, 6
    v_add_u32 v5, s47, v5
    v_lshlrev_b32 v6, 4, v0
    s_movk_i32 s48, 3584
    s_mov_b32 s39, 0x05040100
    s_mov_b32 s40, 0x07060302
    s_waitcnt lgkmcnt(0)
    s_load_dword s34, s[32:33], 0
    s_barrier
    global_load_dwordx4 v[80:83], v6, s[8:9]
    global_load_dwordx4 v[84:87], v6, s[8:9] offset:1024
    global_load_dwordx4 v[88:91], v6, s[26:27]
    global_load_dwordx4 v[8:11], v5, s[8:9]
    s_cmp_ge_u32 s2, 224
    s_cbranch_scc1 L_fnoload
    """)
    for i in range(8):
        A(f"global_load_dwordx4 v[{16+4*i}:{19+4*i}], v4, s[20:21]{fw}")
        A(f"global_load_dwordx4 v[{48+4*i}:{51+4*i}], v4, s[22:23]{fw}")
        if i < 7: A("v_add_u32 v4, s48, v4")
    A("s_waitcnt vmcnt(16)\ns_branch L_fg\nL_fnoload:\ns_waitcnt vmcnt(0)\nL_fg:")
    A("s_mov_b32 s49, 0xffff0000")
    for c in range(4):
        A(f"v_lshlrev_b32 v92, 16, v{88+c}\nv_and_b32 v93, s49, v{88+c}")
        for b in range(2):
            x = 80 + 4*b + c
            A(f"""
            v_lshlrev_b32 v94, 16, v{x}
            v_and_b32 v95, s49, v{x}
            v_mul_f32 v94, v94, v92
            v_mul_f32 v95, v95, v93
            v_cvt_pk_bf16_f32 v94, v94, v95
            v_and_b32 v95, s49, v94
            v_lshlrev_b32 v94, 16, v94
            """)
            if c == 0: A(f"v_add_f32 v{96+b}, v94, v95")
            else: A(f"v_add_f32 v{96+b}, v{96+b}, v94\nv_add_f32 v{96+b}, v{96+b}, v95")
    A("s_nop 1")
    for sh in ("row_ror:8", "row_ror:4", "row_ror:2", "row_ror:1"):
        A(f"v_add_f32_dpp v96, v96, v96 {sh} row_mask:0xf bank_mask:0xf")
        A(f"v_add_f32_dpp v97, v97, v97 {sh} row_mask:0xf bank_mask:0xf")
        A("s_nop 0")
    A("""
    v_add_f32_dpp v96, v96, v96 row_bcast:15 row_mask:0xa bank_mask:0xf
    v_add_f32_dpp v97, v97, v97 row_bcast:15 row_mask:0xa bank_mask:0xf
    s_nop 0
    v_add_f32_dpp v96, v96, v96 row_bcast:31 row_mask:0xc bank_mask:0xf
    v_add_f32_dpp v97, v97, v97 row_bcast:31 row_mask:0xc bank_mask:0xf
    v_cvt_pk_bf16_f32 v96, v96, v97
    v_and_b32 v97, s49, v96
    v_lshlrev_b32 v96, 16, v96
    v_mul_f32 v96, 0xbfb8aa3b, v96
    v_mul_f32 v97, 0xbfb8aa3b, v97
    v_exp_f32 v96, v96
    v_exp_f32 v97, v97
    s_nop 0
    v_add_f32 v96, 1.0, v96
    v_add_f32 v97, 1.0, v97
    v_rcp_f32 v96, v96
    v_rcp_f32 v97, v97
    s_nop 0
    v_cvt_pk_bf16_f32 v96, v96, v97
    v_and_b32 v97, s49, v96
    v_lshlrev_b32 v96, 16, v96
    v_sub_f32 v98, 1.0, v96
    v_sub_f32 v99, 1.0, v97
    v_cvt_pk_bf16_f32 v98, v98, v99
    v_and_b32 v99, s49, v98
    v_lshlrev_b32 v98, 16, v98
    """)
    A(f"""
    v_mov_b32 v7, {G_L}
    s_mov_b32 exec_lo, 0
    s_mov_b32 exec_hi, 0x80000000
    ds_write_b128 v7, v[96:99]
    s_mov_b64 exec, -1
    s_cmp_ge_u32 s2, 224
    s_cbranch_scc1 L_fdone
    s_mov_b32 s42, 0x00030003
    s_mov_b32 s43, 0x00030003
    s_waitcnt lgkmcnt(0)
    """)
    for m in range(8):
        for r in range(4):
            A(f"v_cndmask_b32 v{80+4*m+r}, 0, v{8+r}, s[42:43]")
        if m < 7: A("s_lshl_b64 s[42:43], s[42:43], 2")
    A(f"""
    s_mul_i32 s46, s44, {1792*16}
    s_lshl_b32 s47, s45, 11
    s_add_u32 s46, s46, s47
    s_add_u32 s46, s46, {FP}
    v_add_u32 v5, s46, v6
    s_waitcnt vmcnt(0)
    """)
    for up in range(2):
        for p in range(4):
            a = 16 + 32*up + 8*p
            for c in range(4):
                A(f"v_perm_b32 v{112+4*(2*c)+p}, v{a+4+c}, v{a+c}, s39")
                A(f"v_perm_b32 v{112+4*(2*c+1)+p}, v{a+4+c}, v{a+c}, s40")
        for j in range(8):
            d = 144 + 4*(j >> 2)
            ab = 80 + 4*(2*(j & 3) + up)
            c = "0" if (up == 0 and (j & 3) == 0) else f"v[{d}:{d+3}]"
            A(f"v_mfma_f32_16x16x32_bf16 v[{d}:{d+3}], v[{ab}:{ab+3}], v[{112+4*j}:{115+4*j}], {c}")
    get_tag()
    A("v_mov_b32 v7, s41\ns_nop 5")
    for r in range(8):
        A(f"v_and_or_b32 v{144+r}, v{144+r}, s38, v7")
    A("global_store_dwordx4 v5, v[144:147], s[32:33] sc1")
    A("global_store_dwordx4 v5, v[148:151], s[32:33] offset:1024 sc1")
    A("L_fdone:")
    A("s_waitcnt lgkmcnt(0)")
    stamp(4)
    A("s_barrier")
    dump_stamps(4, 5)
    A("s_endpgm")

    A("L_att:")
    A(f"""
    s_setprio 2
    s_sub_u32 s37, s37, 2
    s_lshr_b32 s44, s36, 4
    s_and_b32 s45, s36, 15
    s_lshl_b32 s46, s44, 25
    s_lshl_b32 s47, s35, 22
    s_add_u32 s46, s46, s47
    s_lshl_b32 s47, s45, 16
    s_add_u32 s46, s46, s47
    s_lshl_b32 s51, s37, 13
    s_add_u32 s46, s46, s51
    s_add_u32 s46, s46, 0x300000
    v_lshlrev_b32 v4, 8, v2
    v_add_u32 v4, s46, v4
    v_xor_b32 v5, v3, v2
    v_lshlrev_b32 v5, 4, v5
    v_add_u32 v8, v4, v5
    v_xor_b32 v9, 64, v8
    v_xor_b32 v10, 0x80, v8
    v_xor_b32 v11, 0xc0, v8
    v_lshlrev_b32 v6, 1, v2
    v_xor_b32 v6, v3, v6
    v_lshlrev_b32 v6, 4, v6
    v_add_u32 v12, v4, v6
    v_xor_b32 v13, 0x80, v12
    s_mov_b32 m0, s51
    s_waitcnt lgkmcnt(0)
    s_load_dword s34, s[32:33], 0
    s_add_u32 s52, s10, 0x1000
    s_addc_u32 s53, s11, 0
    s_add_u32 s54, s12, 0x1000
    s_addc_u32 s55, s13, 0
    s_barrier
    """)
    for i in range(8):
        if i == 4: A("s_add_u32 m0, s51, 0x1000\ns_nop 0")
        base = "s[10:11]" if i < 4 else "s[52:53]"
        A(f"global_load_lds_dwordx4 v{8+(i & 3)}, {base} offset:{(i & 3)*1024}{fkv}")
    A(f"s_setprio 1\ns_add_u32 m0, s51, {V_L}")
    A(f"""
    s_and_b32 s56, s36, 7
    s_lshr_b32 s57, s36, 3
    """)
    for i in range(8):
        if i == 4: A(f"s_add_u32 m0, s51, {V_L+0x1000}\ns_nop 0")
        base = "s[12:13]" if i < 4 else "s[54:55]"
        A(f"global_load_lds_dwordx4 v{12+(i & 1)}, {base} offset:{(i & 3)*1024}{fkv}")
    stamp(5)
    A(f"""
    s_lshl_b32 s46, s35, 19
    s_lshl_b32 s47, s56, 14
    s_add_u32 s46, s46, s47
    s_lshl_b32 s47, s37, 11
    s_add_u32 s46, s46, s47
    s_add_u32 m0, s47, {W_L}
    s_lshl_b32 s58, s57, 8
    s_add_u32 s46, s46, s58
    v_lshl_add_u32 v8, v2, 17, v6
    v_add_u32 v8, s46, v8
    v_xor_b32 v9, 0x80, v8
    global_load_lds_dwordx4 v8, s[16:17]{fw}
    global_load_lds_dwordx4 v9, s[16:17] offset:1024{fw}
    """)
    A(f"""
    s_lshl_b32 s59, s35, 3
    s_add_u32 s59, s59, s56
    s_mul_i32 s46, s59, 28
    s_lshl_b32 s47, s37, 2
    v_add_u32 v10, s47, v2
    v_min_u32 v10, 27, v10
    v_add_u32 v10, s46, v10
    v_and_b32 v11, 15, v10
    v_lshlrev_b32 v11, 3, v11
    v_bfe_u32 v14, v10, 4, 3
    v_and_b32 v15, 0xffffff80, v10
    v_add3_u32 v11, v11, v14, v15
    v_lshl_add_u32 v11, v11, 10, v6
    s_and_b32 s46, s37, 1
    s_lshl_b32 s46, s46, 7
    v_xor_b32 v11, s46, v11
    v_add_u32 v11, s58, v11
    s_lshl_b32 s47, s37, 10
    s_add_u32 m0, s47, {D_L}
    s_nop 0
    global_load_lds_dwordx4 v11, s[24:25]{fw}
    """)
    A(f"""
    v_mul_u32_u24 v11, 1792, v3
    v_add_u32 v10, v10, v11
    v_lshlrev_b32 v10, 4, v10
    v_add_u32 v10, {FP}, v10
    """)
    A(f"""
    v_lshl_add_u32 v12, v3, 8, v5
    v_add_u32 v12, s51, v12
    v_xor_b32 v13, 64, v12
    v_xor_b32 v14, 0x80, v12
    v_xor_b32 v15, 0xc0, v12
    v_and_b32 v7, 3, v3
    v_lshlrev_b32 v8, 8, v7
    v_lshl_add_u32 v8, v2, 4, v8
    v_add_u32 v8, {Q_L}, v8
    s_waitcnt vmcnt(11)
    """)
    for t in range(2):
        for j in range(4):
            A(f"ds_read_b128 v[{16+16*t+4*j}:{19+16*t+4*j}], v{12+j} offset:{4096*t}")
    get_tag()
    stamp(6)
    A("s_barrier")
    stamp(7)
    for j in range(4):
        A(f"ds_read_b128 v[{48+4*j}:{51+4*j}], v8 offset:{64*j}")
    A(f"""
    v_lshlrev_b32 v9, 5, v7
    v_add_u32 v9, {MX_L}, v9
    v_lshlrev_b32 v11, 4, v7
    v_lshl_add_u32 v11, v2, 6, v11
    v_add_u32 v11, {P_L}, v11
    s_lshl_b32 s47, s37, 2
    v_add_u32 v12, s47, v9
    s_lshl_b32 s47, s37, 8
    v_add_u32 v13, s47, v11
    s_mov_b32 s49, 0xffff0000
    s_mov_b32 s48, 0x3db504f3
    """)
    for j in range(4):
        A(f"s_waitcnt lgkmcnt({3-j})")
        for t in range(2):
            d = 64 + 4*t
            c = "0" if j == 0 else f"v[{d}:{d+3}]"
            A(f"v_mfma_f32_16x16x32_bf16 v[{d}:{d+3}], v[{16+16*t+4*j}:{19+16*t+4*j}], v[{48+4*j}:{51+4*j}], {c}")
    A("s_nop 7")
    for p in range(4):
        a, b = 64 + 2*p, 65 + 2*p
        A(f"v_cvt_pk_bf16_f32 v{a}, v{a}, v{b}")
    for p in range(4):
        a, b = 64 + 2*p, 65 + 2*p
        A(f"v_and_b32 v{b}, s49, v{a}\nv_lshlrev_b32 v{a}, 16, v{a}")
    for i in range(8):
        A(f"v_mul_f32 v{64+i}, s48, v{64+i}")
    for p in range(4):
        a, b = 64 + 2*p, 65 + 2*p
        A(f"v_cvt_pk_bf16_f32 v{a}, v{a}, v{b}")
    for p in range(4):
        a, b = 64 + 2*p, 65 + 2*p
        A(f"v_and_b32 v{b}, s49, v{a}\nv_lshlrev_b32 v{a}, 16, v{a}")
    A("""
    v_max3_f32 v72, v64, v65, v66
    v_max3_f32 v73, v67, v68, v69
    v_max3_f32 v72, v72, v70, v71
    v_max_f32 v72, v72, v73
    v_mov_b32 v73, v72
    s_nop 1
    v_permlane16_swap_b32 v72, v73
    v_max_f32 v72, v72, v73
    v_mov_b32 v73, v72
    s_nop 1
    v_permlane32_swap_b32 v72, v73
    v_max_f32 v72, v72, v73
    ds_write_b32 v12, v72
    s_waitcnt lgkmcnt(0)
    s_barrier
    ds_read_b128 v[72:75], v9
    ds_read_b128 v[76:79], v9 offset:16
    s_mov_b32 s48, 0x3fb8aa3b
    s_waitcnt lgkmcnt(0)
    v_max3_f32 v72, v72, v73, v74
    v_max3_f32 v76, v76, v77, v78
    v_max3_f32 v72, v72, v75, v79
    v_max_f32 v72, v72, v76
    """)
    for i in range(8):
        A(f"v_sub_f32 v{64+i}, v{64+i}, v72")
    for i in range(8):
        A(f"v_mul_f32 v{64+i}, s48, v{64+i}")
    for i in range(8):
        A(f"v_exp_f32 v{64+i}, v{64+i}")
    A("s_nop 0")
    for p in range(4):
        A(f"v_cvt_pk_bf16_f32 v{76+p}, v{64+2*p}, v{65+2*p}")
    A(f"""
    ds_write_b128 v13, v[76:79]
    v_add_f32 v64, v64, v65
    v_add_f32 v66, v66, v67
    v_add_f32 v68, v68, v69
    v_add_f32 v70, v70, v71
    v_add_f32 v64, v64, v66
    v_add_f32 v68, v68, v70
    v_add_f32 v64, v64, v68
    v_mov_b32 v65, v64
    s_nop 1
    v_permlane16_swap_b32 v64, v65
    v_add_f32 v64, v64, v65
    v_mov_b32 v65, v64
    s_nop 1
    v_permlane32_swap_b32 v64, v65
    v_add_f32 v64, v64, v65
    ds_write_b32 v12, v64 offset:{L_L-MX_L}
    """)
    A(f"""
    v_lshrrev_b32 v14, 2, v0
    v_and_b32 v15, 7, v14
    v_lshlrev_b32 v15, 1, v15
    v_lshrrev_b32 v73, 1, v7
    s_lshl_b32 s47, s37, 1
    v_add_u32 v73, s47, v73
    v_xor_b32 v15, v15, v73
    v_lshlrev_b32 v15, 4, v15
    v_lshl_add_u32 v14, v14, 8, v15
    v_and_b32 v15, 1, v0
    v_lshl_add_u32 v14, v15, 3, v14
    v_add_u32 v14, {V_L}, v14
    v_mov_b32 v6, s41
    s_cmp_ge_u32 s37, 4
    s_cbranch_scc1 L_b3
    s_waitcnt vmcnt(3)
    L_b3:
    s_waitcnt lgkmcnt(0)
    s_barrier
    """)
    stamp(8)
    for ks in range(8):
        A(f"ds_read_b128 v[{16+4*ks}:{19+4*ks}], v11 offset:{256*ks}")
    for ks in range(4):
        for t in range(2):
            A(f"ds_read_b64_tr_b16 v[{48+4*ks+2*t}:{49+4*ks+2*t}], v14 offset:{8192*ks+4096*t}")
    A("global_load_dwordx4 v[80:83], v10, s[32:33] sc1")
    A(f"""
    s_cmp_lg_u32 s37, 0
    s_cbranch_scc1 L_noml
    ds_read_b128 v[84:87], v9 offset:{L_L-MX_L}
    ds_read_b128 v[88:91], v9 offset:{L_L-MX_L+16}
    s_lshl_b32 s46, s35, 5
    s_add_u32 s46, s46, s36
    s_lshl_b32 s46, s46, 5
    s_add_u32 s46, s46, {ML}
    v_lshlrev_b32 v15, 2, v0
    v_add_u32 v15, s46, v15
    s_waitcnt lgkmcnt(0)
    v_add_f32 v84, v84, v85
    v_add_f32 v86, v86, v87
    v_add_f32 v88, v88, v89
    v_add_f32 v90, v90, v91
    v_add_f32 v84, v84, v86
    v_add_f32 v88, v88, v90
    v_add_f32 v84, v84, v88
    v_cmp_gt_u32 vcc, 4, v0
    s_nop 1
    v_cndmask_b32 v84, v84, v72, vcc
    v_and_or_b32 v84, v84, s38, v6
    s_mov_b64 exec, 0xff
    global_store_dword v15, v84, s[32:33] sc1
    s_mov_b64 exec, -1
    L_noml:
    """)
    for ks in range(4):
        A(f"s_waitcnt lgkmcnt({6-2*ks})")
        c = "0" if ks == 0 else "v[64:67]"
        A(f"v_mfma_f32_16x16x32_bf16 v[64:67], v[{16+4*ks}:{19+4*ks}], v[{48+4*ks}:{51+4*ks}], {c}")
    A(f"""
    s_lshl_b32 s46, s35, 16
    s_add_u32 s46, s46, {AP}
    s_lshl_b32 s47, s36, 8
    s_add_u32 s47, s47, s51
    s_add_u32 s47, s47, s46
    v_lshlrev_b32 v15, 4, v3
    v_add_u32 v15, s47, v15
    s_lshl_b32 s47, s56, 13
    s_add_u32 s46, s46, s47
    s_lshr_b32 s44, s37, 2
    s_lshl_b32 s47, s44, 12
    s_add_u32 s46, s46, s47
    s_and_b32 s47, s37, 3
    s_lshl_b32 s47, s47, 6
    s_add_u32 s46, s46, s47
    v_lshlrev_b32 v12, 8, v3
    v_lshl_add_u32 v12, v2, 4, v12
    v_add_u32 v12, s46, v12
    s_lshl_b32 s46, s35, 10
    s_lshl_b32 s47, s44, 9
    s_add_u32 s46, s46, s47
    s_add_u32 s46, s46, {ML}
    v_lshlrev_b32 v13, 5, v3
    v_add_u32 v13, s46, v13
    s_cmp_lt_u32 s37, 4
    s_cbranch_scc1 L_b4
    s_waitcnt vmcnt(4)
    L_b4:
    s_barrier
    """)
    stamp(9)
    for ks in range(4, 8):
        for t in range(2):
            A(f"ds_read_b64_tr_b16 v[{32+4*ks+2*t}:{33+4*ks+2*t}], v14 offset:{8192*ks+4096*t}")
    for ks in range(4, 8):
        A(f"s_waitcnt lgkmcnt({14-2*ks})")
        A(f"v_mfma_f32_16x16x32_bf16 v[64:67], v[{16+4*ks}:{19+4*ks}], v[{32+4*ks}:{35+4*ks}], v[64:67]")
    A("s_nop 7")
    for r in range(4):
        A(f"v_and_or_b32 v{64+r}, v{64+r}, s38, v6")
    A("""
    s_mov_b64 exec, 0xffff
    global_store_dwordx4 v15, v[64:67], s[32:33] sc1
    s_mov_b64 exec, -1
    """)
    stamp(10)
    A("""
    global_load_dwordx4 v[84:87], v13, s[32:33] sc1
    global_load_dwordx4 v[88:91], v13, s[32:33] offset:16 sc1
    s_waitcnt vmcnt(3)
    L_fchk:
    """)
    def check4(b, acc, first=True):
        for r in range(4):
            A(f"v_xor_b32 v{b+r}, s41, v{b+r}")
        if first:
            A(f"v_or3_b32 v{acc}, v{b}, v{b+1}, v{b+2}\nv_or_b32 v{acc}, v{acc}, v{b+3}")
        else:
            A(f"v_or3_b32 v{acc}, v{acc}, v{b}, v{b+1}\nv_or3_b32 v{acc}, v{acc}, v{b+2}, v{b+3}")
    def rowsum4(b, op="v_add_f32"):
        for sh in ("row_ror:8", "row_ror:4", "row_ror:2", "row_ror:1"):
            for r in range(4):
                A(f"{op}_dpp v{b+r}, v{b+r}, v{b+r} {sh} row_mask:0xf bank_mask:0xf")
    check4(80, 68)
    A(f"""
    v_and_b32 v68, 0x3ff, v68
    v_cmp_ne_u32 vcc, 0, v68
    s_cbranch_vccz L_fok
    s_sub_u32 s50, s50, 1
    s_cbranch_scc1 L_fok
    global_load_dwordx4 v[80:83], v10, s[32:33] sc1
    s_waitcnt vmcnt(0)
    s_branch L_fchk
    L_fok:
    """)
    rowsum4(80)
    A(f"""
    v_cvt_pk_bf16_f32 v80, v80, v81
    v_cvt_pk_bf16_f32 v82, v82, v83
    v_and_b32 v81, s49, v80
    v_lshlrev_b32 v80, 16, v80
    v_and_b32 v83, s49, v82
    v_lshlrev_b32 v82, 16, v82
    v_mul_f32 v68, 0xbfb8aa3b, v80
    v_mul_f32 v69, 0xbfb8aa3b, v81
    v_exp_f32 v68, v68
    v_exp_f32 v69, v69
    s_nop 0
    v_add_f32 v68, 1.0, v68
    v_add_f32 v69, 1.0, v69
    v_rcp_f32 v68, v68
    v_rcp_f32 v69, v69
    s_nop 0
    v_mul_f32 v80, v80, v68
    v_mul_f32 v81, v81, v69
    v_cvt_pk_bf16_f32 v80, v80, v81
    v_and_b32 v81, s49, v80
    v_lshlrev_b32 v80, 16, v80
    v_mul_f32 v80, v80, v82
    v_mul_f32 v81, v81, v83
    v_cvt_pk_bf16_f32 v80, v80, v81
    s_cmp_eq_u32 s37, 7
    s_cselect_b32 s46, 0, -1
    v_and_b32 v80, s46, v80
    """)
    A(f"""
    s_and_b32 s46, s37, 3
    s_lshl_b32 s46, s46, 4
    s_lshl_b32 s47, s44, 3
    s_add_u32 s46, s46, s47
    s_add_u32 s46, s46, {H_L}
    v_lshlrev_b32 v68, 1, v2
    v_add_u32 v68, s46, v68
    ds_write_b16 v68, v80
    ds_write_b16_d16_hi v68, v80 offset:64
    global_load_dwordx4 v[80:83], v12, s[32:33] sc1
    s_waitcnt vmcnt(1)
    L_mlchk:
    """)
    check4(84, 68)
    check4(88, 68, False)
    A(f"""
    v_and_b32 v68, 0x3ff, v68
    v_cmp_ne_u32 vcc, 0, v68
    s_cbranch_vccz L_mlok
    s_sub_u32 s50, s50, 1
    s_cbranch_scc1 L_mlok
    global_load_dwordx4 v[84:87], v13, s[32:33] sc1
    global_load_dwordx4 v[88:91], v13, s[32:33] offset:16 sc1
    s_waitcnt vmcnt(0)
    s_branch L_mlchk
    L_mlok:
    s_waitcnt lgkmcnt(0)
    s_barrier
    """)
    stamp(11)
    A(f"""
    v_add_u32 v14, {W_L-V_L}, v14
    v_and_b32 v15, 1, v0
    v_lshlrev_b32 v69, 6, v15
    v_lshl_add_u32 v69, v2, 4, v69
    v_add_u32 v69, {H_L}, v69
    v_lshlrev_b32 v70, 2, v15
    v_add_u32 v70, {G_L}, v70
    ds_read_b64_tr_b16 v[24:25], v14 offset:{D_L-W_L}
    ds_read_b64_tr_b16 v[26:27], v14 offset:{D_L-W_L+4096}
    ds_read_b128 v[28:31], v69
    ds_read2_b32 v[32:33], v70 offset0:0 offset1:2
    ds_read_b64_tr_b16 v[16:17], v14
    ds_read_b64_tr_b16 v[18:19], v14 offset:4096
    ds_read_b64_tr_b16 v[20:21], v14 offset:8192
    ds_read_b64_tr_b16 v[22:23], v14 offset:12288
    """)
    for r in range(4):
        A(f"v_mov_b32 v{92+r}, v{84+r}")
    rowsum4(92, "v_max_f32")
    A("s_waitcnt lgkmcnt(5)")
    A("v_mfma_f32_16x16x32_bf16 v[64:67], v[24:27], v[28:31], 0")
    for r in range(4):
        A(f"v_sub_f32 v{84+r}, v{84+r}, v{92+r}")
    for r in range(4):
        A(f"v_mul_f32 v{84+r}, s48, v{84+r}")
    for r in range(4):
        A(f"v_exp_f32 v{84+r}, v{84+r}")
    A("s_nop 0")
    for r in range(4):
        A(f"v_mul_f32 v{88+r}, v{88+r}, v{84+r}")
    rowsum4(88)
    for r in range(4):
        A(f"v_rcp_f32 v{88+r}, v{88+r}")
    A("s_nop 0")
    for r in range(4):
        A(f"v_mul_f32 v{84+r}, v{84+r}, v{88+r}")
    A("s_waitcnt lgkmcnt(0)")
    for r in range(4):
        A(f"v_mul_f32 v{64+r}, v{64+r}, v33")
    A(f"""
    s_lshr_b32 s46, s37, 1
    s_lshl_b32 s46, s46, 6
    s_and_b32 s47, s37, 1
    s_lshl_b32 s47, s47, 3
    s_add_u32 s46, s46, s47
    s_add_u32 s46, s46, {O_L}
    v_lshlrev_b32 v70, 4, v2
    v_add_u32 v68, s46, v70
    v_lshl_add_u32 v69, v15, 7, v70
    v_add_u32 v69, {O_L}, v69
    s_lshl_b32 s46, s59, 12
    s_lshl_b32 s47, s57, 10
    s_add_u32 s46, s46, s47
    s_lshl_b32 s47, s37, 6
    s_add_u32 s46, s46, s47
    s_add_u32 s46, s46, {OP}
    v_lshl_add_u32 v15, v15, 9, v70
    v_add_u32 v15, s46, v15
    L_achk:
    s_waitcnt vmcnt(0)
    """)
    check4(80, 71)
    A(f"""
    v_and_b32 v71, 0x3ff, v71
    v_cmp_ne_u32 vcc, 0, v71
    s_cbranch_vccz L_aok
    s_sub_u32 s50, s50, 1
    s_cbranch_scc1 L_aok
    global_load_dwordx4 v[80:83], v12, s[32:33] sc1
    s_branch L_achk
    L_aok:
    """)
    stamp(12)
    for r in range(4):
        A(f"v_mul_f32 v{80+r}, v{80+r}, v{84+r}")
    rowsum4(80)
    A(f"""
    v_cvt_pk_bf16_f32 v80, v80, v81
    v_cvt_pk_bf16_f32 v81, v82, v83
    ds_write_b64 v68, v[80:81]
    s_waitcnt lgkmcnt(0)
    s_barrier
    ds_read_b128 v[24:27], v69
    ds_read_b128 v[28:31], v69 offset:64
    s_waitcnt lgkmcnt(1)
    v_mfma_f32_16x16x32_bf16 v[72:75], v[16:19], v[24:27], 0
    s_waitcnt lgkmcnt(0)
    v_mfma_f32_16x16x32_bf16 v[72:75], v[20:23], v[28:31], v[72:75]
    s_nop 7
    """)
    for r in range(4):
        A(f"v_fma_f32 v{64+r}, v{72+r}, v32, v{64+r}")
    for r in range(4):
        A(f"v_and_or_b32 v{64+r}, v{64+r}, s38, v6")
    A(f"""
    s_mov_b32 exec_lo, 0x00030003
    s_mov_b32 exec_hi, 0x00030003
    global_store_dwordx4 v15, v[64:67], s[32:33] sc1
    s_mov_b64 exec, -1
    s_cmp_lg_u32 s37, 0
    s_cbranch_scc1 L_end
    """)
    stamp(13)
    A(f"""
    s_lshl_b32 s46, s35, 2
    s_add_u32 s46, s46, s57
    s_lshl_b32 s47, s46, 7
    s_lshl_b32 s45, s56, 4
    s_add_u32 s47, s47, s45
    s_add_u32 s47, s47, {OP}
    v_lshlrev_b32 v12, 12, v0
    v_add_u32 v12, s47, v12
    L_oget:
    global_load_dwordx4 v[80:83], v12, s[32:33] sc1
    s_bfe_u32 s47, s46, 0x10002
    s_lshl_b32 s47, s47, 10
    s_lshr_b32 s45, s46, 3
    s_lshl_b32 s45, s45, 8
    s_add_u32 s47, s47, s45
    s_and_b32 s45, s46, 3
    s_lshl_b32 s45, s45, 6
    s_add_u32 s47, s47, s45
    s_lshl_b32 s45, s56, 3
    s_add_u32 s47, s47, s45
    v_mov_b32 v13, s47
    s_waitcnt vmcnt(0)
    """)
    check4(80, 71)
    A(f"""
    v_and_b32 v71, 0x3ff, v71
    v_cmp_ne_u32 vcc, 0, v71
    s_cbranch_vccz L_ook
    s_sub_u32 s50, s50, 1
    s_cbranch_scc0 L_oget
    L_ook:
    """)
    stamp(14)
    rowsum4(80)
    for r in range(4):
        A(f"v_add_f32_dpp v{80+r}, v{80+r}, v{80+r} row_bcast:15 row_mask:0xa bank_mask:0xf")
    for r in range(4):
        A(f"v_add_f32_dpp v{80+r}, v{80+r}, v{80+r} row_bcast:31 row_mask:0xc bank_mask:0xf")
    A(f"""
    v_cvt_pk_bf16_f32 v80, v80, v81
    v_cvt_pk_bf16_f32 v81, v82, v83
    s_mov_b32 exec_lo, 0
    s_mov_b32 exec_hi, 0x80000000
    global_store_dwordx2 v13, v[80:81], s[28:29]
    s_cmp_lg_u32 s2, 0
    s_cbranch_scc1 L_fin
    v_mov_b32 v13, 0
    v_mov_b32 v14, s34
    global_store_dword v13, v14, s[32:33] sc1
    L_fin:
    """)
    if stamps:
        A("s_waitcnt vmcnt(0)")
        stamp(15)
        dump_stamps(5, 16)
    A("L_end:")
    A("s_endpgm")

    out = HDR
    out += "; Override launch geometry by editing the next line.\n"
    out += f"; @launch grid=(256,1,1) block=(640,1,1) lds={LDS_TOTAL}\n"
    out += f'.amdgcn_target "amdgcn-amd-amdhsa--gfx950"\n.text\n.globl {NAME}\n.p2align 8\n.type {NAME},@function\n{NAME}:\n'
    out += "\n".join(L) + "\n"
    out += f""".section .rodata,"a"
.p2align 6
.amdhsa_kernel {NAME}
  .amdhsa_next_free_vgpr 152
  .amdhsa_next_free_sgpr 96
  .amdhsa_accum_offset 152
  .amdhsa_group_segment_fixed_size 0
  .amdhsa_kernarg_size 104
  .amdhsa_user_sgpr_count 2
  .amdhsa_user_sgpr_kernarg_segment_ptr 1
  .amdhsa_system_sgpr_workgroup_id_x 1
  .amdhsa_float_denorm_mode_32 3
.end_amdhsa_kernel
"""
    open(fn, "w").write(out)

if __name__ == "__main__":
    gen("k1.s", stamps=False)
    gen("k1s.s", stamps=True)
    gen("k1_nont.s", nt_kv=False, nt_w=False)
```

```python
import sys, re
NAME = "gated_mix__sliding_block_cached__swiglu_ffn__decode_kernel"
def add_probe(src, dst, b, K, mode="max", nst=16):
    s = open(src).read()
    m = re.search(r"; @launch grid=(\S+) block=(\S+) lds=(\d+)\n", s)
    s = s.replace(m.group(0), f"; @launch kernel={NAME} grid={m.group(1)} block={m.group(2)} lds={m.group(3)}\n; @launch kernel=probe_kernel grid=(1,1,1) block=(64,1,1) lds=0\n")
    op = "v_max_i32" if mode == "max" else "v_min_i32"
    body = f"""
.text
.globl probe_kernel
.p2align 8
.type probe_kernel,@function
probe_kernel:
    s_cmp_ge_u32 s2, 1
    s_cbranch_scc1 P_end
    s_load_dwordx2 s[4:5], s[0:1], 96
    v_mul_u32_u24 v1, {nst*8}, v0
    v_add_u32 v1, 0x8000000, v1
    s_waitcnt lgkmcnt(0)
"""
    for i in range(4):
        body += f"    global_load_dword v{4+i}, v1, s[4:5]\n    global_load_dword v{8+i}, v1, s[4:5] offset:{8*b}\n    v_add_u32 v1, {64*nst*8}, v1\n"
    body += "    s_waitcnt vmcnt(0)\n    v_readfirstlane_b32 s6, v4\n    s_nop 3\n"
    for i in range(8):
        body += f"    v_subrev_u32 v{4+i}, s6, v{4+i}\n"
    body += f"""    v_min_i32 v4, v4, v5
    v_min_i32 v6, v6, v7
    v_min_i32 v4, v4, v6
    {op} v8, v8, v9
    {op} v10, v10, v11
    {op} v8, v8, v10
    s_nop 1
"""
    for sh in ("row_ror:8 row_mask:0xf", "row_ror:4 row_mask:0xf", "row_ror:2 row_mask:0xf", "row_ror:1 row_mask:0xf", "row_bcast:15 row_mask:0xa", "row_bcast:31 row_mask:0xc"):
        body += f"    v_min_i32_dpp v4, v4, v4 {sh} bank_mask:0xf\n    {op}_dpp v8, v8, v8 {sh} bank_mask:0xf\n    s_nop 1\n"
    body += f"""    v_sub_u32 v8, v8, v4
    s_nop 1
    v_readlane_b32 s7, v8, 63
    s_nop 3
    s_min_u32 s7, s7, 20000
    s_mul_i32 s7, s7, {K}
    s_memrealtime s[8:9]
    s_waitcnt lgkmcnt(0)
P_spin:
    s_memrealtime s[10:11]
    s_waitcnt lgkmcnt(0)
    s_sub_u32 s12, s10, s8
    s_cmp_lt_u32 s12, s7
    s_cbranch_scc1 P_spin
P_end:
    s_endpgm
.section .rodata,"a"
.p2align 6
.amdhsa_kernel probe_kernel
  .amdhsa_next_free_vgpr 16
  .amdhsa_next_free_sgpr 16
  .amdhsa_accum_offset 16
  .amdhsa_group_segment_fixed_size 0
  .amdhsa_kernarg_size 104
  .amdhsa_user_sgpr_count 2
  .amdhsa_user_sgpr_kernarg_segment_ptr 1
  .amdhsa_system_sgpr_workgroup_id_x 1
.end_amdhsa_kernel
"""
    open(dst, "w").write(s + body)
if __name__ == "__main__":
    src = sys.argv[1]
    for spec in sys.argv[2:]:
        b, K, mode = spec.split(",")
        add_probe(src, src.replace(".s", f"_p{b}_{K}_{mode}.s"), int(b), int(K), mode)
```

```python
import sys
NAME = "gated_mix__sliding_block_cached__swiglu_ffn__decode_kernel"
HDR = open("gated_mix__sliding_block_cached__swiglu_ffn__decode.s.ref").read().split("; Override launch")[0]

XC = 0x400
QP, FP, AP, OP, ML = 0x1000, 0x41000, 0xB1000, 0x131000, 0x171000
STAMP = 0x8000000
K_L, V_L, W_L, D_L = 0, 65536, 131072, 147456
MISC = 155648
Q_L = MISC
P_L = MISC + 1024
MX_L = MISC + 3072
L_L = MISC + 3200
G_L = MISC + 3328
X_L = MISC + 3344
O_L = MISC + 3360
H_L = MISC + 3616
LDS_TOTAL = MISC + 3840
SPIN = 200000
ROR = ("row_ror:8", "row_ror:4", "row_ror:2", "row_ror:1")

def gen(fn, stamps=None, win=24, win0=16, unthr=36, psleep=60, rot=True, prewarm=True, nt=" nt", out_fl="",
        fsleep=20, osleep=8, asleep=0, fast=True, pretouch=True, so=None, stage1=5):
    L = []
    def A(s):
        for line in s.strip("\n").split("\n"):
            t = line.strip()
            if t: L.append(t if t.endswith(":") else "    " + t)
    ST = stamps or []
    def stamp(i):
        if i in ST: A(f"s_memrealtime s[{64+2*i}:{65+2*i}]")
    def dump_stamps(ids):
        ids = [i for i in ids if i in ST]
        if not ids: return
        A("s_waitcnt lgkmcnt(0)\ns_mov_b64 exec, 1")
        A(f"s_mul_i32 s44, s2, 128\ns_add_u32 s44, s44, {STAMP}\nv_mov_b32 v1, s44")
        for i in ids:
            A(f"v_mov_b32 v2, s{64+2*i}\nv_mov_b32 v3, s{65+2*i}\nglobal_store_dwordx2 v1, v[2:3], s[32:33] offset:{8*i}\ns_nop 1")
    S_L = MISC + 3840
    def park_stamps(ids):
        ids = [i for i in ids if i in ST]
        if not ids: return
        A(f"s_waitcnt lgkmcnt(0)\nv_mov_b32 v1, {S_L}")
        for i in ids:
            A(f"v_mov_b32 v2, s{64+2*i}\nv_mov_b32 v3, s{65+2*i}\nds_write_b64 v1, v[2:3] offset:{8*i}")
        A("s_waitcnt lgkmcnt(0)")
    def dump_all():
        if not ST: return
        A(f"s_mov_b64 exec, -1\nv_mov_b32 v1, {S_L}")
        for i in (0, 1, 2, 3, 4, 5, 6, 15):
            if i in ST:
                A(f"ds_read_b64 v[2:3], v1 offset:{8*i}\ns_waitcnt lgkmcnt(0)\nv_readfirstlane_b32 s{64+2*i}, v2\nv_readfirstlane_b32 s{65+2*i}, v3")
        A("s_nop 4")
        dump_stamps(range(16))
    def get_tag():
        A("s_waitcnt lgkmcnt(0)\ns_add_u32 s34, s34, 1\ns_and_b32 s41, s34, 0x3ff")
    def xor_or(b, n, acc, first):
        for r in range(n): A(f"v_xor_b32 v{b+r}, s41, v{b+r}")
        regs = [f"v{b+r}" for r in range(n)]
        if not first: regs = [f"v{acc}"] + regs
        while len(regs) > 1:
            take = regs[:3]; regs = regs[3:]
            A(f"v_or3_b32 v{acc}, {take[0]}, {take[1]}, {take[2]}" if len(take) == 3 else f"v_or_b32 v{acc}, {take[0]}, {take[1]}")
            regs = [f"v{acc}"] + regs
    def dpp(op, r, sh, src=None):
        src = r if src is None else src
        A(f"{op}_dpp v{r}, v{src}, v{src} {sh} row_mask:0xf bank_mask:0xf")
    def unpack(lo, hi, src):
        A(f"v_and_b32 v{hi}, s49, v{src}\nv_lshlrev_b32 v{lo}, 16, v{src}")
    def xrow(op, r, t):
        A(f"v_mov_b32 v{t}, v{r}\ns_nop 1\nv_permlane16_swap_b32 v{r}, v{t}\n{op} v{r}, v{r}, v{t}")
        A(f"v_mov_b32 v{t}, v{r}\ns_nop 1\nv_permlane32_swap_b32 v{r}, v{t}\n{op} v{r}, v{r}, v{t}")
    def scatter4(b):
        A(f"""
        v_permlane32_swap_b32 v{b}, v{b+2}
        v_permlane32_swap_b32 v{b+1}, v{b+3}
        v_add_f32 v{b}, v{b}, v{b+2}
        v_add_f32 v{b+1}, v{b+1}, v{b+3}
        s_nop 1
        v_permlane16_swap_b32 v{b}, v{b+1}
        v_add_f32 v{b}, v{b}, v{b+1}
        """)
    def poll(lbl, loads, b, n, acc, wait0="s_waitcnt vmcnt(0)"):
        A(wait0)
        A(f"{lbl}:")
        xor_or(b, n, acc, True)
        A(f"""
        v_and_b32 v{acc}, 0x3ff, v{acc}
        v_cmp_ne_u32 vcc, 0, v{acc}
        s_cbranch_vccz {lbl}_ok
        s_sub_u32 s50, s50, 1
        s_cbranch_scc1 {lbl}_ok
        s_mov_b64 exec, vcc
        {loads}
        s_waitcnt vmcnt(0)
        s_branch {lbl}
        {lbl}_ok:
        s_mov_b64 exec, -1
        """)
    def store2(ins):
        nonlocal_id[0] += 1
        k = nonlocal_id[0]
        if fast:
            A(f"s_cmp_lg_u32 s3, 0\ns_cbranch_scc1 L_sf{k}\n{ins} sc1\ns_branch L_sd{k}\nL_sf{k}:\n{ins}\nL_sd{k}:")
        else:
            A(f"{ins} sc1")
    nonlocal_id = [0]

    A("s_getpc_b64 s[4:5]\nL_pc:")
    A("s_cmp_ge_u32 s2, 256\ns_cbranch_scc1 L_end")
    stamp(0)
    A("""
    s_load_dwordx16 s[8:23], s[0:1], 0
    s_load_dwordx8 s[24:31], s[0:1], 64
    s_load_dwordx2 s[32:33], s[0:1], 96
    s_lshr_b32 s36, s2, 3
    """)
    if prewarm:
        A("""
        s_and_b32 s3, s36, 7
        s_mulk_i32 s3, 2816
        v_lshl_add_u32 v1, v0, 2, s3
        v_min_u32 v1, L_end-L_pc, v1
        global_load_dword v151, v1, s[4:5]
        """)
    A(f"""
    v_lshrrev_b32 v1, 6, v0
    v_and_b32 v0, 63, v0
    v_readfirstlane_b32 s37, v1
    s_and_b32 s35, s2, 7
    v_lshrrev_b32 v2, 4, v0
    v_and_b32 v3, 15, v0
    s_cmp_lt_u32 s37, 3
    s_cbranch_scc1 L_aux
    v_lshlrev_b32 v4, 2, v0
    v_mov_b32 v5, -1
    v_add_u32 v4, {MX_L}, v4
    ds_write_b32 v4, v5
    ds_write_b32 v4, v5 offset:{X_L-MX_L}
    s_barrier
    s_waitcnt lgkmcnt(0)
    s_barrier
    s_branch L_att
    L_aux:
    s_cmp_eq_u32 s37, 2
    s_cbranch_scc1 L_ld
    s_setprio 3
    s_cmp_eq_u32 s37, 1
    s_cbranch_scc1 L_f
    """)
    A(f"""
    s_and_b32 s44, s36, 3
    s_lshr_b32 s45, s36, 2
    s_lshl_b32 s46, s35, 10
    s_lshl_b32 s44, s44, 8
    s_lshl_b32 s47, s45, 19
    s_add_u32 s46, s46, s44
    s_add_u32 s46, s46, s47
    v_lshlrev_b32 v4, 16, v2
    v_lshl_add_u32 v4, v3, 4, v4
    v_add_u32 v4, s46, v4
    v_bfe_u32 v5, v3, 2, 1
    v_lshlrev_b32 v5, 10, v5
    v_lshl_add_u32 v5, v2, 4, v5
    s_lshl_b32 s47, s45, 7
    v_add_u32 v5, s47, v5
    s_movk_i32 s48, 0x2000
    s_waitcnt lgkmcnt(0)
    global_load_dwordx4 v[8:11], v5, s[8:9]
    global_load_dwordx4 v[12:15], v5, s[8:9] offset:64
    """)
    for i in range(16):
        A(f"global_load_dwordx4 v[{16+4*i}:{19+4*i}], v4, s[14:15]{nt}")
        if i == 7: A("v_add_u32 v4, 204800, v4")
        elif i < 15: A("v_add_u32 v4, s48, v4")
    A("s_barrier\ns_barrier\ns_branch L_q2")

    A(f"""
    L_f:
    s_and_b32 s44, s2, 15
    s_lshr_b32 s45, s2, 4
    s_mul_i32 s46, s44, {32*3584}
    s_lshl_b32 s47, s45, 8
    s_add_u32 s46, s46, s47
    v_mul_u32_u24 v4, {8*3584}, v2
    v_lshl_add_u32 v4, v3, 4, v4
    v_add_u32 v4, s46, v4
    v_and_b32 v5, 1, v3
    v_lshlrev_b32 v5, 10, v5
    v_lshl_add_u32 v5, v2, 4, v5
    s_lshl_b32 s47, s44, 6
    v_add_u32 v5, s47, v5
    v_lshlrev_b32 v6, 4, v0
    s_movk_i32 s48, 3584
    s_waitcnt lgkmcnt(0)
    s_barrier
    global_load_dwordx4 v[8:11], v5, s[8:9]
    s_cmp_ge_u32 s2, {0 if (so and "nogu" in so) else 224}
    s_cbranch_scc1 L_f1
    """)
    for i in range(8):
        A(f"global_load_dwordx4 v[{16+4*i}:{19+4*i}], v4, s[20:21]{nt}")
        A(f"global_load_dwordx4 v[{48+4*i}:{51+4*i}], v4, s[22:23]{nt}")
        if i < 7: A("v_add_u32 v4, s48, v4")
    A("""L_f1:
    global_load_dwordx4 v[152:155], v6, s[8:9]
    global_load_dwordx4 v[156:159], v6, s[8:9] offset:1024
    global_load_dwordx4 v[160:163], v6, s[26:27]
    v_mov_b32 v164, 0
    global_load_dword v164, v164, s[28:29]
    s_barrier
    s_branch L_f2""")

    A(f"""
    L_ld:
    s_setprio 2
    s_lshr_b32 s44, s36, 4
    s_and_b32 s45, s36, 15
    s_lshl_b32 s46, s44, 25
    s_lshl_b32 s47, s35, 22
    s_add_u32 s46, s46, s47
    s_lshl_b32 s47, s45, 16
    s_add_u32 s46, s46, s47
    s_add_u32 s46, s46, 0x300000
    v_lshlrev_b32 v4, 8, v2
    v_add_u32 v4, s46, v4
    v_xor_b32 v5, v3, v2
    v_lshl_add_u32 v8, v5, 4, v4
    v_xor_b32 v9, 64, v8
    v_xor_b32 v10, 0x80, v8
    v_xor_b32 v11, 0xc0, v8
    """)
    if rot: A("s_add_u32 s53, s35, s45\ns_and_b32 s53, s53, 15\ns_lshl_b32 s53, s53, 12")
    else: A("s_mov_b32 s53, 0")
    A(f"""
    s_mov_b32 s58, 0x4000000
    s_mov_b32 s59, 0x20000
    s_mov_b32 m0, 0
    s_waitcnt lgkmcnt(0)
    s_mov_b32 s56, s10
    s_mov_b32 s57, s11
    s_barrier
    s_barrier
    """)
    NL = 152
    n = [0]
    def thr():
        k = n[0]
        if k < NL - unthr:
            if k == win0 and win0 < win: A(f"s_waitcnt vmcnt({win0-1})")
            elif k >= win: A(f"s_waitcnt vmcnt({win-1})")
            if k == 64 + win - 1: A("ds_write_b32 v18, v18 offset:4"); stamp(6)
        n[0] += 1
    def nxt(m0):
        A(f"s_mov_b32 m0, {m0}\ns_add_u32 s53, s53, 0x1000\ns_and_b32 s53, s53, 0xffff")
    for it in range(16):
        for q in range(4):
            thr()
            A(f"buffer_load_dwordx4 v{8+q}, s[56:59], s53 offen offset:{1024*q}{nt} lds")
        nxt(K_L + 4096*(it+1) if it < 15 else D_L)
        if it == win0 // 4 - 1:
            A(f"""
            s_mov_b32 s60, s12
            s_mov_b32 s61, s13
            s_mov_b32 s62, 0x4000000
            s_mov_b32 s63, 0x20000
            v_lshlrev_b32 v6, 1, v2
            v_xor_b32 v6, v3, v6
            v_lshlrev_b32 v6, 4, v6
            v_add_u32 v12, v4, v6
            v_xor_b32 v13, 0x80, v12
            s_and_b32 s54, s36, 7
            s_lshr_b32 s55, s36, 3
            s_min_u32 s46, s54, 6
            s_mul_i32 s47, s35, 7
            s_add_u32 s46, s46, s47
            s_lshr_b32 s47, s46, 2
            s_lshl_b32 s47, s47, 7
            s_and_b32 s46, s46, 3
            s_lshl_b32 s46, s46, 1
            s_add_u32 s46, s46, s47
            s_lshl_b32 s46, s46, 10
            s_lshl_b32 s48, s55, 8
            s_add_u32 s46, s46, s48
            v_lshl_add_u32 v14, v2, 13, v6
            v_add_u32 v14, s46, v14
            v_xor_b32 v15, 0x80, v14
            s_lshl_b32 s46, s35, 19
            s_lshl_b32 s47, s54, 14
            s_add_u32 s46, s46, s47
            s_add_u32 s46, s46, s48
            v_lshl_add_u32 v16, v2, 10, v6
            v_add_u32 v16, s46, v16
            v_xor_b32 v17, 0x80, v16
            s_mov_b32 s40, s24
            s_mov_b32 s41, s25
            s_mov_b32 s42, {1792*1024}
            s_mov_b32 s43, 0x20000
            s_mov_b32 s44, s16
            s_mov_b32 s45, s17
            s_mov_b32 s46, 0x400000
            s_mov_b32 s47, 0x20000
            v_mov_b32 v18, {X_L}
            """)
    for i in range(8):
        A(f"s_mov_b32 s52, {(32*(i & 3) + (i >> 2))*1024}")
        thr()
        A(f"buffer_load_dwordx4 v{14+(i & 1)}, s[40:43], s52 offen{nt} lds")
        A(f"s_mov_b32 m0, {D_L + 1024*(i+1) if i < 7 else V_L}")
    A("s_nop 0")
    for it in range(16):
        for q in range(4):
            thr()
            A(f"buffer_load_dwordx4 v{12+(q & 1)}, s[60:63], s53 offen offset:{1024*q}{nt} lds")
        nxt(V_L + 4096*(it+1) if it < 15 else W_L)
    for i in range(16):
        A(f"s_mov_b32 s52, {(i & 3)*131072 + (i >> 2)*4096}")
        thr()
        A(f"buffer_load_dwordx4 v{16+(i & 1)}, s[44:47], s52 offen{nt} lds")
        if i < 15: A(f"s_mov_b32 m0, {W_L + 1024*(i+1)}")
    stamp(5)
    A(f"s_waitcnt vmcnt({16 + 8*(8-stage1)})\nds_write_b32 v18, v18 offset:8")
    park_stamps([5, 6])
    A(f"""
    s_waitcnt vmcnt(16)
    s_barrier
    s_waitcnt vmcnt(0)
    s_barrier
    s_endpgm
    """)

    A(f"""
    L_att:
    s_sub_u32 s37, s37, 3
    s_lshl_b32 s52, s37, 10
    s_lshl_b32 s51, s37, 13
    s_mov_b32 s38, 0xfffffc00
    s_mov_b32 s50, {SPIN}
    s_and_b32 s54, s36, 7
    s_lshr_b32 s55, s36, 3
    s_lshl_b32 s42, s35, 3
    s_add_u32 s42, s42, s54
    s_lshr_b32 s44, s37, 2
    """)
    A(f"""
    v_and_b32 v7, 3, v3
    s_lshl_b32 s46, s35, 8
    s_lshl_b32 s47, s37, 5
    s_add_u32 s47, s47, s46
    s_add_u32 s47, s47, s36
    s_lshl_b32 s45, s47, 8
    s_add_u32 s45, s45, {AP}
    v_lshlrev_b32 v10, 4, v7
    v_lshl_add_u32 v102, v2, 6, v10
    v_add_u32 v102, s45, v102
    s_lshl_b32 s45, s47, 5
    s_add_u32 s45, s45, {ML}
    v_lshl_add_u32 v103, v7, 3, s45
    s_lshl_b32 s47, s42, 5
    s_lshl_b32 s46, s44, 4
    s_add_u32 s47, s47, s46
    s_lshl_b32 s45, s47, 5
    s_add_u32 s45, s45, {ML}
    v_lshl_add_u32 v105, v0, 3, s45
    s_lshl_b32 s45, s47, 8
    s_and_b32 s46, s37, 3
    s_lshl_b32 s46, s46, 6
    s_add_u32 s45, s45, s46
    s_add_u32 s45, s45, {AP}
    v_lshrrev_b32 v106, 2, v0
    v_lshl_add_u32 v104, v106, 8, v10
    v_add_u32 v104, s45, v104
    """)
    A(f"""
    v_and_b32 v4, 1, v0
    s_lshl_b32 s43, s35, 2
    s_and_b32 s46, s36, 3
    s_add_u32 s43, s43, s46
    s_lshl_b32 s47, s43, 13
    s_add_u32 s47, s47, s52
    s_add_u32 s47, s47, {OP}
    v_lshl_add_u32 v116, v0, 4, s47
    v_and_b32 v117, 7, v0
    v_lshl_add_u32 v117, v117, 2, v2
    s_lshl_b32 s47, s37, 2
    s_add_u32 s47, s47, {P_L}
    v_lshl_add_u32 v117, v117, 5, s47
    v_and_b32 v119, 31, v0
    v_lshlrev_b32 v118, 5, v119
    v_add_u32 v118, {P_L}, v118
    s_lshl_b32 s46, s43, 5
    v_and_b32 v119, 30, v119
    v_lshl_add_u32 v119, v4, 10, v119
    v_add_u32 v119, s46, v119
    """)
    A(f"""
    v_xor_b32 v5, v3, v2
    v_lshlrev_b32 v5, 4, v5
    v_lshl_add_u32 v120, v3, 8, v5
    v_add_u32 v120, s51, v120
    v_xor_b32 v121, 64, v120
    v_xor_b32 v122, 0x80, v120
    v_xor_b32 v123, 0xc0, v120
    v_lshlrev_b32 v8, 8, v7
    v_lshl_add_u32 v8, v2, 4, v8
    v_add_u32 v8, {Q_L}, v8
    v_lshlrev_b32 v9, 5, v7
    v_add_u32 v9, {MX_L}, v9
    s_lshl_b32 s47, s37, 2
    v_add_u32 v12, s47, v9
    v_lshl_add_u32 v11, v2, 6, v10
    v_add_u32 v11, {P_L}, v11
    s_lshl_b32 s47, s37, 8
    v_add_u32 v13, s47, v11
    v_and_b32 v15, 7, v106
    v_lshlrev_b32 v15, 1, v15
    v_lshrrev_b32 v73, 1, v7
    s_lshl_b32 s47, s37, 1
    v_add_u32 v73, s47, v73
    v_xor_b32 v15, v15, v73
    v_lshlrev_b32 v15, 4, v15
    v_lshl_add_u32 v14, v106, 8, v15
    v_lshl_add_u32 v14, v4, 3, v14
    v_add_u32 v14, {V_L}, v14
    v_add_u32 v5, {W_L-V_L}, v14
    s_mov_b32 s49, 0xffff0000
    s_mov_b32 s48, 0x3db504f3
    """)
    A(f"""
    s_lshr_b32 s46, s37, 1
    s_lshl_b32 s46, s46, 6
    s_and_b32 s47, s37, 1
    s_lshl_b32 s47, s47, 3
    s_add_u32 s46, s46, s47
    s_add_u32 s46, s46, {O_L}
    v_lshl_add_u32 v108, v2, 1, v10
    v_add_u32 v108, s46, v108
    v_lshlrev_b32 v70, 4, v2
    v_lshl_add_u32 v109, v4, 7, v70
    v_add_u32 v109, {O_L}, v109
    v_lshl_add_u32 v110, v4, 6, v70
    v_add_u32 v110, {H_L}, v110
    s_lshl_b32 s46, s55, 16
    s_add_u32 s46, s46, s51
    s_lshl_b32 s47, s42, 7
    s_add_u32 s46, s46, s47
    s_add_u32 s46, s46, {OP}
    v_lshl_add_u32 v111, v0, 3, s46
    v_mov_b32 v15, {G_L}
    s_waitcnt lgkmcnt(0)
    s_load_dword s34, s[32:33], 0
    """)
    if pretouch:
        A(f"s_sleep {psleep}")
        A("v_cmp_gt_u32 vcc, 8, v3\ns_nop 1\nv_cndmask_b32 v107, v103, v102, vcc")
        A("global_load_dword v107, v107, s[32:33] sc1")
        A("s_cmp_lt_u32 s36, 28\ns_cbranch_scc1 L_nopt\nglobal_load_dwordx4 v[80:83], v116, s[32:33] sc1\nL_nopt:\ns_waitcnt vmcnt(0)")
    get_tag()
    def lds_spin(lbl, reads, regs, sleep=1):
        A(f"{lbl}:")
        A(reads)
        A("s_waitcnt lgkmcnt(0)")
        rr = list(regs)
        acc = None
        while rr:
            if acc is None:
                if len(rr) == 1: acc = rr[0]; rr = []; break
                take = rr[:3]; rr = rr[3:]
            else:
                take = [acc] + rr[:2]; rr = rr[2:]
            A(f"v_max3_u32 v1, v{take[0]}, v{take[1]}, v{take[2]}" if len(take) == 3 else f"v_max_u32 v1, v{take[0]}, v{take[1]}")
            acc = 1
        A(f"""
        v_cmp_eq_u32 vcc, -1, v{acc}
        s_cbranch_vccz {lbl}_ok
        s_sub_u32 s50, s50, 1
        s_cbranch_scc1 {lbl}_ok
        s_sleep {sleep}
        s_branch {lbl}
        {lbl}_ok:
        """)
    A("v_mov_b32 v6, s41")
    lds_spin("L_w1", f"ds_read_b64 v[84:85], v15 offset:{X_L-G_L}", [84, 85], sleep=2)
    for j in range(4):
        A(f"ds_read_b128 v[{48+4*j}:{51+4*j}], v8 offset:{64*j}")
        for t in range(2):
            A(f"ds_read_b128 v[{16+16*t+4*j}:{19+16*t+4*j}], v{120+j} offset:{4096*t}")
    stamp(7)
    A("v_readfirstlane_b32 s3, v84")
    for j in range(4):
        A(f"s_waitcnt lgkmcnt({9-3*j})")
        for t in range(2):
            d = 64 + 4*t
            c = "0" if j == 0 else f"v[{d}:{d+3}]"
            A(f"v_mfma_f32_16x16x32_bf16 v[{d}:{d+3}], v[{16+16*t+4*j}:{19+16*t+4*j}], v[{48+4*j}:{51+4*j}], {c}")
    A("s_nop 6")
    for p in range(4): A(f"v_cvt_pk_bf16_f32 v{64+2*p}, v{64+2*p}, v{65+2*p}")
    for p in range(4): unpack(64+2*p, 65+2*p, 64+2*p)
    for i in range(4): A(f"v_pk_mul_f32 v[{64+2*i}:{65+2*i}], v[{64+2*i}:{65+2*i}], s[48:49] op_sel_hi:[1,0]")
    for p in range(4): A(f"v_cvt_pk_bf16_f32 v{64+2*p}, v{64+2*p}, v{65+2*p}")
    for p in range(4): unpack(64+2*p, 65+2*p, 64+2*p)
    A("""
    v_max3_f32 v72, v64, v65, v66
    v_max3_f32 v73, v67, v68, v69
    v_max3_f32 v72, v72, v70, v71
    v_max_f32 v72, v72, v73
    """)
    xrow("v_max_f32", 72, 73)
    A("ds_write_b32 v12, v72\ns_mov_b32 s48, 0x3fb8aa3b")
    for i in range(4): A(f"v_pk_mul_f32 v[{64+2*i}:{65+2*i}], v[{64+2*i}:{65+2*i}], s[48:49] op_sel_hi:[1,0]")
    lds_spin("L_w2", "ds_read_b128 v[72:75], v9\nds_read_b128 v[76:79], v9 offset:16", range(72, 80))
    A("""
    v_max3_f32 v72, v72, v73, v74
    v_max3_f32 v76, v76, v77, v78
    v_max3_f32 v72, v72, v75, v79
    v_max_f32 v72, v72, v76
    v_mul_f32 v73, s48, v72
    """)
    for i in range(8): A(f"v_sub_f32 v{64+i}, v{64+i}, v73")
    for i in range(8): A(f"v_exp_f32 v{64+i}, v{64+i}")
    for p in range(4): A(f"v_cvt_pk_bf16_f32 v{76+p}, v{64+2*p}, v{65+2*p}")
    A(f"""
    ds_write_b128 v13, v[76:79]
    v_pk_add_f32 v[64:65], v[64:65], v[66:67]
    v_pk_add_f32 v[68:69], v[68:69], v[70:71]
    v_pk_add_f32 v[64:65], v[64:65], v[68:69]
    v_add_f32 v64, v64, v65
    """)
    xrow("v_add_f32", 64, 65)
    A(f"ds_write_b32 v12, v64 offset:{L_L-MX_L}")
    lds_spin("L_w3", f"ds_read_b128 v[84:87], v9 offset:{L_L-MX_L}\nds_read_b128 v[88:91], v9 offset:{L_L-MX_L+16}", range(84, 92))
    for i in range(8):
        A(f"ds_read_b128 v[{16+4*i}:{19+4*i}], v11 offset:{256*i}")
    stamp(8)
    A(f"""
    v_pk_add_f32 v[84:85], v[84:85], v[86:87]
    v_pk_add_f32 v[88:89], v[88:89], v[90:91]
    v_pk_add_f32 v[84:85], v[84:85], v[88:89]
    v_add_f32 v73, v84, v85
    v_and_or_b32 v72, v72, s38, v6
    v_and_or_b32 v73, v73, s38, v6
    s_mov_b64 exec, 15
    """)
    store2("global_store_dwordx2 v103, v[72:73], s[32:33]")
    A("s_mov_b64 exec, -1\ns_mov_b32 s46, 0x000f000f\ns_mov_b32 s47, 0x000f000f")
    lds_spin("L_w4", f"ds_read_b32 v84, v15 offset:{X_L-G_L+8}", [84], sleep=2)
    for i in range(stage1):
        for t in range(2):
            A(f"ds_read_b64_tr_b16 v[{124+4*i+2*t}:{125+4*i+2*t}], v14 offset:{8192*i+4096*t}")
    stamp(9)
    for i in range(stage1):
        A(f"s_waitcnt lgkmcnt({2*(stage1-1-i)})")
        c = "0" if i == 0 else "v[64:67]"
        A(f"v_mfma_f32_16x16x32_bf16 v[64:67], v[{124+4*i}:{127+4*i}], v[{16+4*i}:{19+4*i}], {c}")
    A("s_barrier")
    for i in range(stage1, 8):
        for t in range(2):
            A(f"ds_read_b64_tr_b16 v[{124+4*i+2*t}:{125+4*i+2*t}], v14 offset:{8192*i+4096*t}")
    A("global_load_dwordx2 v[84:85], v105, s[32:33] sc1")
    stamp(10)
    for i in range(stage1, 8):
        A(f"s_waitcnt lgkmcnt({14-2*i})")
        A(f"v_mfma_f32_16x16x32_bf16 v[64:67], v[{124+4*i}:{127+4*i}], v[{16+4*i}:{19+4*i}], v[64:67]")
    A("s_mov_b64 exec, s[46:47]\ns_nop 6")
    for r in range(4): A(f"v_and_or_b32 v{64+r}, v{64+r}, s38, v6")
    store2("global_store_dwordx4 v102, v[64:67], s[32:33]")
    A("s_mov_b64 exec, -1")
    if asleep: A(f"s_sleep {asleep}")
    A("""
    global_load_dwordx4 v[80:83], v104, s[32:33] sc1
    ds_read_b64_tr_b16 v[92:93], v5 offset:16384
    ds_read_b64_tr_b16 v[94:95], v5 offset:20480
    ds_read_b128 v[96:99], v110
    ds_read_b128 v[112:115], v15
    s_waitcnt lgkmcnt(0)
    v_mfma_f32_16x16x32_bf16 v[76:79], v[96:99], v[92:95], 0
    """)
    wts_first = True
    poll("L_ml", "global_load_dwordx2 v[84:85], v105, s[32:33] sc1", 84, 2, 86, wait0="s_waitcnt vmcnt(2)")
    dpp("v_max_f32", 86, "row_ror:4", 84); A("s_nop 1")
    dpp("v_max_f32", 86, "row_ror:8")
    xrow("v_max_f32", 86, 87)
    A("""
    v_sub_f32 v84, v84, v86
    v_mul_f32 v84, s48, v84
    v_exp_f32 v84, v84
    s_nop 0
    v_mul_f32 v85, v85, v84
    s_nop 1
    """)
    dpp("v_add_f32", 85, "row_ror:4"); A("s_nop 1")
    dpp("v_add_f32", 85, "row_ror:8")
    xrow("v_add_f32", 85, 87)
    A("v_rcp_f32 v85, v85\nv_pk_mul_f32 v[76:77], v[76:77], v[114:115]\nv_mul_f32 v84, v84, v85")
    A("s_barrier")
    A("""
    ds_read_b64_tr_b16 v[16:17], v5
    ds_read_b64_tr_b16 v[18:19], v5 offset:4096
    ds_read_b64_tr_b16 v[20:21], v5 offset:8192
    ds_read_b64_tr_b16 v[22:23], v5 offset:12288
    """)
    poll("L_a", "global_load_dwordx4 v[80:83], v104, s[32:33] sc1", 80, 4, 86)
    stamp(11)
    A("v_pk_mul_f32 v[80:81], v[80:81], v[84:85] op_sel_hi:[1,0]\nv_pk_mul_f32 v[82:83], v[82:83], v[84:85] op_sel_hi:[1,0]\ns_nop 1")
    scatter4(80)
    A("s_nop 1"); dpp("v_add_f32", 80, "row_ror:4"); A("s_nop 1"); dpp("v_add_f32", 80, "row_ror:8")
    A(f"""
    v_cvt_pk_bf16_f32 v80, v80, v80
    ds_write_b16 v108, v80
    s_waitcnt lgkmcnt(0)
    s_barrier
    ds_read_b128 v[24:27], v109
    ds_read_b128 v[28:31], v109 offset:64
    s_waitcnt lgkmcnt(1)
    v_mfma_f32_16x16x32_bf16 v[72:75], v[24:27], v[16:19], 0
    s_waitcnt lgkmcnt(0)
    v_mfma_f32_16x16x32_bf16 v[72:75], v[28:31], v[20:23], v[72:75]
    s_mov_b64 exec, 0xffff
    s_cmp_lt_u32 s36, 28
    s_nop 5
    v_pk_fma_f32 v[76:77], v[72:73], v[112:113], v[76:77]
    v_and_or_b32 v76, v76, s38, v6
    v_and_or_b32 v77, v77, s38, v6
    global_store_dwordx2 v111, v[76:77], s[32:33] sc1
    """)
    stamp(12)
    if ST:
        A("s_cbranch_scc0 L_final\ns_cmp_lg_u32 s37, 0\ns_cbranch_scc1 L_end")
        stamp(13); stamp(14)
        dump_all()
        A("s_endpgm\nL_final:")
    else:
        A("s_cbranch_scc1 L_end")
    A("s_mov_b64 exec, -1")
    if osleep: A(f"s_sleep {osleep}")
    A("global_load_dwordx4 v[80:83], v116, s[32:33] sc1")
    poll("L_o", "global_load_dwordx4 v[80:83], v116, s[32:33] sc1", 80, 4, 86)
    scatter4(80)
    A("s_nop 1"); dpp("v_add_f32", 80, "row_ror:8")
    A(f"""
    ds_write_b32 v117, v80
    s_waitcnt lgkmcnt(0)
    s_barrier
    s_cmp_lg_u32 s37, 0
    s_cbranch_scc1 L_end
    ds_read_b128 v[80:83], v118
    ds_read_b128 v[84:87], v118 offset:16
    """)
    stamp(13)
    A(f"""
    s_mov_b64 exec, 0xffffffff
    s_waitcnt lgkmcnt(0)
    v_pk_add_f32 v[80:81], v[80:81], v[82:83]
    v_pk_add_f32 v[84:85], v[84:85], v[86:87]
    v_pk_add_f32 v[80:81], v[80:81], v[84:85]
    v_add_f32 v80, v80, v81
    v_cvt_pk_bf16_f32 v80, v80, v80
    global_store_short v119, v80, s[28:29]{out_fl}
    s_cmp_lg_u32 s2, 255
    s_cbranch_scc1 L_fin
    s_mov_b64 exec, 1
    v_mov_b32 v13, 0
    v_mov_b32 v14, s34
    global_store_dword v13, v14, s[32:33] sc1
    L_fin:
    """)
    if ST:
        A("s_waitcnt vmcnt(0)")
        stamp(14)
        dump_all()
    A("s_endpgm")

    A(f"""
    L_q2:
    s_load_dword s34, s[32:33], 0
    s_mov_b32 s38, 0xfffffc00
    s_mov_b32 s50, {SPIN}
    s_mov_b32 s39, 0x05040100
    s_mov_b32 s40, 0x07060302
    s_mov_b32 s42, 0x11111111
    s_mov_b32 s43, 0x11111111
    s_lshl_b32 s46, s35, 15
    s_lshl_b32 s47, s36, 9
    s_add_u32 s47, s47, s46
    s_add_u32 s47, s47, {QP}
    v_and_b32 v5, 1, v2
    v_lshlrev_b32 v5, 14, v5
    v_lshl_add_u32 v5, v3, 4, v5
    v_lshrrev_b32 v6, 1, v2
    v_lshl_add_u32 v5, v6, 8, v5
    v_add_u32 v5, s47, v5
    s_lshr_b32 s47, s36, 4
    s_lshl_b32 s47, s47, 14
    s_add_u32 s47, s47, s46
    s_add_u32 s47, s47, {QP}
    v_lshlrev_b32 v6, 4, v0
    v_add_u32 v6, s47, v6
    s_getreg_b32 s51, hwreg(HW_REG_XCC_ID, 0, 4)
    s_lshl_b32 s52, s35, 7
    s_add_u32 s52, s52, {XC}
    s_waitcnt vmcnt(16)
    """)
    for jj in range(4):
        for t in range(2):
            for r in range(4):
                A(f"v_cndmask_b32 v{80+16*t+4*jj+r}, 0, v{8+4*t+r}, s[42:43]")
        if jj < 3: A("s_lshl_b64 s[42:43], s[42:43], 1")
    def perms(a, p):
        for c in range(4):
            A(f"v_perm_b32 v{112+4*(2*c)+p}, v{a+4+c}, v{a+c}, s39")
            A(f"v_perm_b32 v{112+4*(2*c+1)+p}, v{a+4+c}, v{a+c}, s40")
    for t in range(2):
        for p in range(4):
            A(f"s_waitcnt vmcnt({16 - 8*t - 2*p - 2})")
            if t == 1 and p == 3: stamp(15)
            perms(16 + 32*t + 8*p, p)
        for j in range(8):
            d = 144 + 4*(j >> 2); ab = 80 + 16*t + 4*(j & 3)
            c = "0" if (t == 0 and (j & 3) == 0) else f"v[{d}:{d+3}]"
            A(f"v_mfma_f32_16x16x32_bf16 v[{d}:{d+3}], v[{ab}:{ab+3}], v[{112+4*j}:{115+4*j}], {c}")
        if t == 0:
            get_tag()
            A("""
            v_mov_b32 v7, s41
            s_mov_b32 s42, 0
            s_mov_b32 s43, -1
            s_lshl_b32 s53, s34, 4
            s_or_b32 s53, s53, s51
            s_lshl_b32 s54, s36, 2
            s_add_u32 s54, s54, s52
            v_mov_b32 v8, s54
            v_mov_b32 v9, s53
            v_and_b32 v10, 31, v0
            v_lshl_add_u32 v10, v10, 2, s52
            """)
    A("s_nop 7")
    for r in range(4): A(f"v_cndmask_b32 v{144+r}, v{144+r}, v{148+r}, s[42:43]")
    for r in range(4): A(f"v_and_or_b32 v{144+r}, v{144+r}, s38, v7")
    A("global_store_dwordx4 v5, v[144:147], s[32:33] sc1")
    A("s_mov_b64 exec, 1\nglobal_store_dword v8, v9, s[32:33] sc1\ns_mov_b64 exec, -1")
    stamp(1)
    A("s_waitcnt vmcnt(0)")
    stamp(2)
    if so is not None and "noqg" in so:
        stamp(3); park_stamps([0, 1, 2, 3, 15]); A("s_endpgm")
    A("L_qg:\nv_mov_b32 v4, v6")
    for i in range(16):
        A(f"global_load_dwordx4 v[{16+4*i}:{19+4*i}], v4, s[32:33] offset:{(i & 3)*1024} sc1")
        if (i & 3) == 3 and i < 15: A("v_add_u32 v4, 0x1000, v4")
    A("global_load_dword v11, v10, s[32:33] sc1")
    for i in range(16):
        A(f"s_waitcnt vmcnt({16-i})")
        b = 16 + 4*i
        xor_or(b, 4, 8, i == 0)
        if i >= 2:
            acc = 16 + 4*(i & 1)
            A(f"v_pk_add_f32 v[{acc}:{acc+1}], v[{acc}:{acc+1}], v[{b}:{b+1}]")
            A(f"v_pk_add_f32 v[{acc+2}:{acc+3}], v[{acc+2}:{acc+3}], v[{b+2}:{b+3}]")
    A(f"""
    v_and_b32 v8, 0x3ff, v8
    v_cmp_ne_u32 vcc, 0, v8
    s_waitcnt vmcnt(0)
    s_sub_u32 s50, s50, 1
    s_cbranch_scc1 L_qdone
    s_cbranch_vccnz L_qg
    L_qdone:
    v_cmp_ne_u32 vcc, s53, v11
    v_cvt_pk_bf16_f32 v12, v16, v17
    v_cvt_pk_bf16_f32 v13, v18, v19
    v_cvt_pk_bf16_f32 v14, v20, v21
    v_cvt_pk_bf16_f32 v15, v22, v23
    v_lshrrev_b32 v4, 1, v2
    v_lshlrev_b32 v4, 8, v4
    v_lshl_add_u32 v4, v3, 4, v4
    v_and_b32 v5, 1, v2
    v_lshl_add_u32 v4, v5, 3, v4
    v_add_u32 v4, {Q_L}, v4
    ds_write_b64 v4, v[12:13]
    ds_write_b64 v4, v[14:15] offset:512
    s_cmp_eq_u64 vcc, 0
    s_cselect_b32 s44, 1, 0
    v_mov_b32 v4, {X_L}
    v_mov_b32 v5, s44
    ds_write_b32 v4, v5
    s_waitcnt lgkmcnt(0)
    """)
    stamp(3)
    park_stamps([0, 1, 2, 3, 15])

    A("s_endpgm")

    A(f"""
    L_f2:
    s_load_dword s34, s[32:33], 0
    s_mov_b32 s38, 0xfffffc00
    s_mov_b32 s50, {SPIN}
    s_mov_b32 s49, 0xffff0000
    """)
    get_tag()
    A(f"""
    v_mov_b32 v7, s41
    s_cmp_lt_u32 s2, {0 if (so and "nogu" in so) else 224}
    s_cbranch_scc1 L_fmain
    s_waitcnt vmcnt(0)
    s_sleep 40
    s_branch L_fgate
    L_fmain:
    s_mov_b32 s39, 0x05040100
    s_mov_b32 s40, 0x07060302
    s_mov_b32 s42, 0x00030003
    s_mov_b32 s43, 0x00030003
    s_mul_i32 s46, s44, {1792*16}
    s_lshl_b32 s47, s45, 11
    s_add_u32 s46, s46, s47
    s_add_u32 s46, s46, {FP}
    v_add_u32 v5, s46, v6
    s_waitcnt vmcnt(20)
    """)
    for m in range(8):
        for r in range(4): A(f"v_cndmask_b32 v{80+4*m+r}, 0, v{8+r}, s[42:43]")
        if m < 7: A("s_lshl_b64 s[42:43], s[42:43], 2")
    A("s_waitcnt vmcnt(4)")
    for up in range(2):
        for p in range(4): perms(16 + 32*up + 8*p, p)
        for j in range(8):
            d = 144 + 4*(j >> 2); ab = 80 + 4*(2*(j & 3) + up)
            c = "0" if (up == 0 and (j & 3) == 0) else f"v[{d}:{d+3}]"
            A(f"v_mfma_f32_16x16x32_bf16 v[{d}:{d+3}], v[{ab}:{ab+3}], v[{112+4*j}:{115+4*j}], {c}")
    A("s_nop 3")
    for r in range(8): A(f"v_and_or_b32 v{144+r}, v{144+r}, s38, v7")
    A("global_store_dwordx4 v5, v[144:147], s[32:33] sc1")
    A("global_store_dwordx4 v5, v[148:151], s[32:33] offset:1024 sc1")
    A("L_fgate:\ns_waitcnt vmcnt(3)")
    for c in range(4):
        unpack(92, 93, 160 + c)
        for b in range(2):
            unpack(94, 95, 152 + 4*b + c)
            A("v_pk_mul_f32 v[94:95], v[94:95], v[92:93]\nv_cvt_pk_bf16_f32 v94, v94, v95")
            unpack(94, 95, 94)
            if c == 0: A(f"v_add_f32 v{96+b}, v94, v95")
            else: A(f"v_add_f32 v{96+b}, v{96+b}, v94\nv_add_f32 v{96+b}, v{96+b}, v95")
    A("s_nop 1")
    for sh in ROR:
        dpp("v_add_f32", 96, sh); dpp("v_add_f32", 97, sh); A("s_nop 0")
    A("""
    v_add_f32_dpp v96, v96, v96 row_bcast:15 row_mask:0xa bank_mask:0xf
    v_add_f32_dpp v97, v97, v97 row_bcast:15 row_mask:0xa bank_mask:0xf
    s_nop 0
    v_add_f32_dpp v96, v96, v96 row_bcast:31 row_mask:0xc bank_mask:0xf
    v_add_f32_dpp v97, v97, v97 row_bcast:31 row_mask:0xc bank_mask:0xf
    v_cvt_pk_bf16_f32 v96, v96, v97
    """)
    unpack(96, 97, 96)
    A("""
    v_mul_f32 v96, 0xbfb8aa3b, v96
    v_mul_f32 v97, 0xbfb8aa3b, v97
    v_exp_f32 v96, v96
    v_exp_f32 v97, v97
    s_nop 0
    v_add_f32 v96, 1.0, v96
    v_add_f32 v97, 1.0, v97
    v_rcp_f32 v96, v96
    v_rcp_f32 v97, v97
    s_nop 0
    v_cvt_pk_bf16_f32 v96, v96, v97
    """)
    unpack(96, 97, 96)
    A("v_sub_f32 v98, 1.0, v96\nv_sub_f32 v99, 1.0, v97\nv_cvt_pk_bf16_f32 v98, v98, v99")
    unpack(98, 99, 98)
    A(f"""
    v_mov_b32 v8, {G_L}
    s_mov_b32 exec_lo, 0
    s_mov_b32 exec_hi, 0x80000000
    ds_write_b128 v8, v[96:99]
    s_mov_b64 exec, -1
    v_lshrrev_b32 v9, 2, v3
    v_lshlrev_b32 v9, 4, v9
    v_and_b32 v8, 1, v2
    v_lshl_add_u32 v9, v8, 3, v9
    v_and_b32 v8, 3, v0
    v_lshl_add_u32 v9, v8, 1, v9
    v_add_u32 v9, {H_L}, v9
    v_mov_b32 v16, 0
    s_and_b32 s46, s36, 7
    s_cmp_eq_u32 s46, 7
    s_cbranch_scc1 L_fh
    s_mul_i32 s47, s35, 7
    s_add_u32 s46, s46, s47
    s_lshl_b32 s46, s46, 9
    s_add_u32 s46, s46, {FP}
    v_lshrrev_b32 v4, 5, v0
    v_mul_u32_u24 v4, {1792*16 - 512}, v4
    v_add3_u32 v5, v4, v6, s46
    s_mov_b32 s48, {2*1792*16}
    s_waitcnt vmcnt(0)
    """)
    if so is not None and "nofg" in so: A("s_branch L_fh")
    if fsleep: A(f"s_sleep {fsleep}")
    loads = "v_mov_b32 v4, v5\n"
    for i in range(8):
        loads += f"global_load_dwordx4 v[{16+4*i}:{19+4*i}], v4, s[32:33] sc1\n"
        if i < 7: loads += "v_add_u32 v4, s48, v4\n"
    A(loads)
    poll("L_fg", loads, 16, 32, 8)
    for st in (16, 8, 4):
        for k in range(0, st, 2):
            A(f"v_pk_add_f32 v[{16+k}:{17+k}], v[{16+k}:{17+k}], v[{16+st+k}:{17+st+k}]")
    for r in range(4): A(f"v_mov_b32 v{20+r}, v{16+r}")
    for r in range(4): A(f"v_permlane32_swap_b32 v{16+r}, v{20+r}")
    A("v_pk_add_f32 v[16:17], v[16:17], v[20:21]\nv_pk_add_f32 v[18:19], v[18:19], v[22:23]")
    A("v_cvt_pk_bf16_f32 v16, v16, v17\nv_cvt_pk_bf16_f32 v18, v18, v19")
    unpack(16, 17, 16); unpack(18, 19, 18)
    A("""
    v_mul_f32 v20, 0xbfb8aa3b, v16
    v_mul_f32 v21, 0xbfb8aa3b, v17
    v_exp_f32 v20, v20
    v_exp_f32 v21, v21
    s_nop 0
    v_add_f32 v20, 1.0, v20
    v_add_f32 v21, 1.0, v21
    v_rcp_f32 v20, v20
    v_rcp_f32 v21, v21
    s_nop 0
    v_pk_mul_f32 v[16:17], v[16:17], v[20:21]
    v_cvt_pk_bf16_f32 v16, v16, v17
    """)
    unpack(16, 17, 16)
    A(f"""
    v_pk_mul_f32 v[16:17], v[16:17], v[18:19]
    v_cvt_pk_bf16_f32 v16, v16, v17
    L_fh:
    ds_write_b16 v9, v16
    ds_write_b16_d16_hi v9, v16 offset:64
    s_waitcnt lgkmcnt(0)
    """)
    stamp(4)
    park_stamps([4])

    A("L_end:\ns_endpgm")

    out = HDR
    out += "; Override launch geometry by editing the next line.\n"
    out += f"; @launch grid=(256,1,1) block=(704,1,1) lds={LDS_TOTAL + (128 if ST else 0)}\n"
    out += f'.amdgcn_target "amdgcn-amd-amdhsa--gfx950"\n.text\n.globl {NAME}\n.p2align 8\n.type {NAME},@function\n{NAME}:\n'
    out += "\n".join(L) + "\n"
    out += f""".section .rodata,"a"
.p2align 6
.amdhsa_kernel {NAME}
  .amdhsa_next_free_vgpr 168
  .amdhsa_next_free_sgpr 96
  .amdhsa_accum_offset 168
  .amdhsa_group_segment_fixed_size 0
  .amdhsa_kernarg_size 104
  .amdhsa_user_sgpr_count 2
  .amdhsa_user_sgpr_kernarg_segment_ptr 1
  .amdhsa_system_sgpr_workgroup_id_x 1
  .amdhsa_float_denorm_mode_32 3
.end_amdhsa_kernel
"""
    open(fn, "w").write(out)

if __name__ == "__main__":
    S = list(range(16))
    gen("k5.s")
    gen("k5s.s", stamps=S)
    gen("k5s_f50.s", stamps=S, fsleep=50)
    gen("k5s_u24.s", stamps=S, fsleep=50, unthr=24)
    gen("k5s_u60.s", stamps=S, fsleep=50, unthr=60)
    gen("k5s_w28.s", stamps=S, fsleep=50, win=28)
    gen("k5l.s", stamps=[0, 14], fsleep=50)
```

```python
import sys, re
NAME = "gated_mix__sliding_block_cached__swiglu_ffn__decode_kernel"
KD = """.section .rodata,"a"
.p2align 6
.amdhsa_kernel %s
  .amdhsa_next_free_vgpr 16
  .amdhsa_next_free_sgpr 24
  .amdhsa_accum_offset 16
  .amdhsa_group_segment_fixed_size 0
  .amdhsa_kernarg_size 104
  .amdhsa_user_sgpr_count 2
  .amdhsa_user_sgpr_kernarg_segment_ptr 1
  .amdhsa_system_sgpr_workgroup_id_x 1
.end_amdhsa_kernel
"""
def add(src, dst, mode, K, b=14, nst=16):
    s = open(src).read()
    m = re.search(r"; @launch grid=(\S+) block=(\S+) lds=(\d+)\n", s)
    s = s.replace(m.group(0), f"; @launch kernel=pre_kernel grid=(1,1,1) block=(64,1,1) lds=0\n; @launch kernel={NAME} grid={m.group(1)} block={m.group(2)} lds={m.group(3)}\n; @launch kernel=probe_kernel grid=(1,1,1) block=(64,1,1) lds=0\n")
    body = """
.text
.globl pre_kernel
.p2align 8
.type pre_kernel,@function
pre_kernel:
    s_cmp_ge_u32 s2, 1
    s_cbranch_scc1 R_end
    s_load_dwordx2 s[4:5], s[0:1], 96
    s_waitcnt lgkmcnt(0)
    s_memrealtime s[8:9]
    s_waitcnt lgkmcnt(0)
    v_mov_b32 v1, 0x9000000
    v_mov_b32 v2, s8
    global_store_dword v1, v2, s[4:5]
R_end:
    s_endpgm
""" + KD % "pre_kernel"
    body += f"""
.text
.globl probe_kernel
.p2align 8
.type probe_kernel,@function
probe_kernel:
    s_memrealtime s[14:15]
    s_cmp_ge_u32 s2, 1
    s_cbranch_scc1 P_end
    s_load_dwordx2 s[4:5], s[0:1], 96
    v_mul_u32_u24 v1, {nst*8}, v0
    v_add_u32 v1, 0x8000000, v1
    v_mov_b32 v12, 0x9000000
    s_waitcnt lgkmcnt(0)
    global_load_dword v12, v12, s[4:5]
"""
    for i in range(4):
        body += f"    global_load_dword v{4+i}, v1, s[4:5]\n    global_load_dword v{8+i}, v1, s[4:5] offset:{8*b}\n    v_add_u32 v1, {64*nst*8}, v1\n"
    body += "    s_waitcnt vmcnt(0)\n    v_readfirstlane_b32 s6, v12\n    s_nop 3\n"
    for i in range(8):
        body += f"    v_subrev_u32 v{4+i}, s6, v{4+i}\n"
    body += """    v_min_i32 v4, v4, v5
    v_min_i32 v6, v6, v7
    v_min_i32 v4, v4, v6
    v_max_i32 v8, v8, v9
    v_max_i32 v10, v10, v11
    v_max_i32 v8, v8, v10
    s_nop 1
"""
    for sh in ("row_ror:8 row_mask:0xf", "row_ror:4 row_mask:0xf", "row_ror:2 row_mask:0xf", "row_ror:1 row_mask:0xf", "row_bcast:15 row_mask:0xa", "row_bcast:31 row_mask:0xc"):
        body += f"    v_min_i32_dpp v4, v4, v4 {sh} bank_mask:0xf\n    v_max_i32_dpp v8, v8, v8 {sh} bank_mask:0xf\n    s_nop 1\n"
    body += """    v_readlane_b32 s16, v4, 63
    v_readlane_b32 s17, v8, 63
    s_nop 3
    s_sub_u32 s14, s14, s6
"""
    body += {"start": "    s_mov_b32 s7, s16\n", "end": "    s_sub_u32 s7, s14, s17\n", "span": "    s_sub_u32 s7, s17, s16\n", "all": "    s_mov_b32 s7, s14\n"}[mode]
    body += f"""    s_min_u32 s7, s7, 20000
    s_mul_i32 s7, s7, {K}
    s_memrealtime s[8:9]
    s_waitcnt lgkmcnt(0)
P_spin:
    s_memrealtime s[10:11]
    s_waitcnt lgkmcnt(0)
    s_sub_u32 s12, s10, s8
    s_cmp_lt_u32 s12, s7
    s_cbranch_scc1 P_spin
P_end:
    s_endpgm
""" + KD % "probe_kernel"
    open(dst, "w").write(s + body)
if __name__ == "__main__":
    src = sys.argv[1]
    for spec in sys.argv[2:]:
        mode, K = spec.split(",")
        add(src, src.replace(".s", f"_{mode}{K}.s"), mode, int(K))
```

```python
import sys, re
sys.path.insert(0, "gen")
from probe import add_probe
NAME = "gated_mix__sliding_block_cached__swiglu_ffn__decode_kernel"
def combo(test, real, dst, b, K, mode, nst):
    add_probe(real, dst, b, K, mode, nst)
    s = open(dst).read()
    t = open(test).read()
    m = re.search(r"; @launch grid=(\S+) block=(\S+) lds=(\d+)\n", t)
    t = t.replace(m.group(0), "").replace(NAME, "test_kernel").replace('.amdgcn_target "amdgcn-amd-amdhsa--gfx950"\n', "")
    t = re.sub(r"\bL_(\w+)", r"T_\1", t)
    first = f"; @launch kernel={NAME}"
    s = s.replace(first, f"; @launch kernel=test_kernel grid={m.group(1)} block={m.group(2)} lds={m.group(3)}\n" + first)
    open(dst, "w").write(s + t)
if __name__ == "__main__":
    real = sys.argv[1]
    for spec in sys.argv[2:]:
        test, b, K, mode, nst = spec.split(",")
        combo(test, real, test.replace(".s", f"_c{b}_{K}_{mode}.s"), int(b), int(K), mode, int(nst))
```
